```python
import torch

def _softmax(x, axis=-1):
    return torch.softmax(x, dim=axis)
def _gelu(x):
    return torch.nn.functional.gelu(x, approximate="tanh")
def _silu(x):
    return torch.nn.functional.silu(x)
def _sigmoid(x):
    return torch.sigmoid(x)
def _layernorm(x, axis=-1, eps=1e-5):
    m = x.mean(dim=axis, keepdim=True)
    v = x.var(dim=axis, keepdim=True, unbiased=False)
    return (x - m) / torch.sqrt(v + eps)
def _scatter_add(tgt, idx, src, axis=0):
    return tgt.clone().index_add_(axis, idx, src)
def _segment_sum(src, seg, n):
    out = torch.zeros((n,) + src.shape[1:], dtype=src.dtype)
    return out.index_add_(0, seg, src)
def _pad(x, pw):
    flat = tuple(v for pair in reversed(pw) for v in pair)
    return torch.nn.functional.pad(x, flat)

kernel_name = 'concat_heads__mha_block_cached__mha_block_cached__near_ridge'

def setup_inputs():

    _w = (lambda a: (lambda t: t.to(torch.bfloat16) if t.is_floating_point() else t)(torch.as_tensor(a)))
    def _A_setup():
        B, Sq, D = 8, 208, 512
        H, Sk, Dh = 32, 512, 128
        return {
            "x": _w((lambda *s: torch.randn(*s, dtype=torch.bfloat16) * 0.8)(B, Sq, D)),
            "k_cache": _w((lambda *s: torch.randn(*s, dtype=torch.bfloat16) * 0.8)(B, H, Sk, Dh)),
            "v_cache": _w((lambda *s: torch.randn(*s, dtype=torch.bfloat16) * 0.05)(B, H, Sk, Dh)),
            "wq": _w((lambda *s: torch.randn(*s, dtype=torch.bfloat16) * 0.8)(D, H * Dh) * (D ** -0.5)),
            "wo": _w((lambda *s: torch.randn(*s, dtype=torch.bfloat16) * 0.05)(H * Dh, D) * ((H * Dh) ** -0.5)),
        }
    _A_in = _A_setup()

    def _B_setup():
        B, Sq, D = 8, 208, 512
        H, Sk, Dh = 32, 512, 128
        return {
            "x": _w((lambda *s: torch.randn(*s, dtype=torch.bfloat16) * 0.8)(B, Sq, D)),
            "k_cache": _w((lambda *s: torch.randn(*s, dtype=torch.bfloat16) * 0.8)(B, H, Sk, Dh)),
            "v_cache": _w((lambda *s: torch.randn(*s, dtype=torch.bfloat16) * 0.05)(B, H, Sk, Dh)),
            "wq": _w((lambda *s: torch.randn(*s, dtype=torch.bfloat16) * 0.8)(D, H * Dh) * (D ** -0.5)),
            "wo": _w((lambda *s: torch.randn(*s, dtype=torch.bfloat16) * 0.05)(H * Dh, D) * ((H * Dh) ** -0.5)),
        }
    _B_in = _B_setup()

    return {
        "A_x": _A_in["x"],
        "A_k_cache": _A_in["k_cache"],
        "A_v_cache": _A_in["v_cache"],
        "A_wq": _A_in["wq"],
        "A_wo": _A_in["wo"],
        "B_x": _B_in["x"],
        "B_k_cache": _B_in["k_cache"],
        "B_v_cache": _B_in["v_cache"],
        "B_wq": _B_in["wq"],
        "B_wo": _B_in["wo"],
    }

def reference(A_x, A_k_cache, A_v_cache, A_wq, A_wo, B_x, B_k_cache, B_v_cache, B_wq, B_wo):
    def _A_ref(x, k_cache, v_cache, wq, wo):
        B, Sq, D = x.shape
        H, Dh = 32, 128
        q = (lambda x, *d: x.permute(*d))((x @ wq).reshape(B, Sq, H, Dh), 0, 2, 1, 3)
        scores = torch.einsum("bhqd,bhkd->bhqk", q, k_cache) * (Dh ** -0.5)
        p = _softmax(scores, axis=-1)
        o = torch.einsum("bhqk,bhkd->bhqd", p, v_cache)
        return (lambda x, *d: x.permute(*d))(o, 0, 2, 1, 3).reshape(B, Sq, H * Dh) @ wo

    def _B_ref(x, k_cache, v_cache, wq, wo):
        B, Sq, D = x.shape
        H, Dh = 32, 128
        q = (lambda x, *d: x.permute(*d))((x @ wq).reshape(B, Sq, H, Dh), 0, 2, 1, 3)
        scores = torch.einsum("bhqd,bhkd->bhqk", q, k_cache) * (Dh ** -0.5)
        p = _softmax(scores, axis=-1)
        o = torch.einsum("bhqk,bhkd->bhqd", p, v_cache)
        return (lambda x, *d: x.permute(*d))(o, 0, 2, 1, 3).reshape(B, Sq, H * Dh) @ wo

    a = _A_ref(A_x, A_k_cache, A_v_cache, A_wq, A_wo)
    b = _B_ref(B_x, B_k_cache, B_v_cache, B_wq, B_wo)
    return torch.concatenate([a, b], axis=-1)
```

```python
import re


def V(n, cnt=1):
    return ('v', n, cnt)


def S(n, cnt=1):
    return ('s', n, cnt)


def rtxt(r):
    if isinstance(r, tuple):
        f, n, c = r
        if c == 1:
            return f"{f}{n}"
        return f"{f}[{n}:{n + c - 1}]"
    if isinstance(r, float):
        return repr(r)
    if isinstance(r, int):
        if -16 <= r <= 64:
            return str(r)
        return hex(r & 0xffffffff)
    return str(r)


def regs(r):
    if isinstance(r, tuple):
        f, n, c = r
        return {(f, n + i) for i in range(c)}
    if r in ('vcc', 'm0', 'exec', 'scc'):
        return {(r, 0)}
    return set()


TRANS = ('v_exp_f32', 'v_log_f32', 'v_rcp_f32', 'v_rsq_f32', 'v_sqrt_f32')


class Ins:
    __slots__ = ('txt', 'kind', 'wr', 'rd', 'srcC', 'dstT', 'srcAB', 'nop', 'label', 'stdata', 'branch')

    def __init__(self, txt, kind, wr=(), rd=()):
        self.txt = txt
        self.kind = kind
        self.wr = set(wr)
        self.rd = set(rd)
        self.srcC = None
        self.dstT = None
        self.srcAB = set()
        self.nop = 0
        self.label = None
        self.stdata = set()
        self.branch = None


class Prog:
    def __init__(self):
        self.ins = []
        self.vm_queue = []

    def raw(self, txt, kind='other', wr=(), rd=()):
        i = Ins(txt, kind, wr, rd)
        self.ins.append(i)
        return i

    def comment(self, t):
        self.raw("; " + t, 'comment')

    def label(self, name):
        i = self.raw(name + ":", 'label')
        i.label = name

    def nop(self, k=0):
        i = self.raw(f"s_nop {k}", 'nop')
        i.nop = k + 1

    def salu(self, op, dst, *srcs):
        wr = regs(dst) | {('scc', 0)}
        rd = set()
        for s in srcs:
            rd |= regs(s)
        ops = ', '.join(rtxt(x) for x in (dst,) + srcs)
        return self.raw(f"{op} {ops}", 'salu', wr, rd)

    def scmp(self, op, a, b):
        return self.raw(f"{op} {rtxt(a)}, {rtxt(b)}", 'salu', {('scc', 0)}, regs(a) | regs(b))

    def branch(self, op, lab):
        i = self.raw(f"{op} {lab}", 'branch')
        i.branch = lab
        return i

    def waitcnt(self, vm=None, lgkm=None):
        p = []
        if vm is not None:
            assert 0 <= vm <= 63
            p.append(f"vmcnt({vm})")
        if lgkm is not None:
            assert 0 <= lgkm <= 15
            p.append(f"lgkmcnt({lgkm})")
        self.raw("s_waitcnt " + ' '.join(p), 'other')

    def barrier(self):
        self.raw("s_barrier", 'other')

    def sload(self, op, dst, base, off):
        return self.raw(f"{op} {rtxt(dst)}, {rtxt(base)}, {rtxt(off)}", 'smem', regs(dst), regs(base))

    def valu(self, op, dst, *srcs, mods=''):
        wr = regs(dst)
        rd = set()
        for s in srcs:
            rd |= regs(s)
        kind = 'valu'
        if op in TRANS:
            kind = 'trans'
        if op.startswith('v_permlane'):
            kind = 'permlane'
            wr |= regs(srcs[0])
            rd |= regs(dst)
        if op in ('v_readfirstlane_b32', 'v_readlane_b32'):
            kind = 'rfl'
        if op in ('v_fmac_f32',):
            rd |= regs(dst)
        if op.startswith('v_cndmask') and len(srcs) == 2:
            rd |= {('vcc', 0)}
        ops = ', '.join(rtxt(x) for x in (dst,) + srcs)
        if op.startswith('v_cndmask') and len(srcs) == 2:
            ops += ', vcc'
        return self.raw(f"{op} {ops}{(' ' + mods) if mods else ''}", kind, wr, rd)

    def mfma(self, d, a, b, c):
        rd = regs(a) | regs(b) | regs(c)
        i = self.raw(f"v_mfma_f32_16x16x32_bf16 {rtxt(d)}, {rtxt(a)}, {rtxt(b)}, {rtxt(c)}", 'mfma', regs(d), rd)
        i.srcC = c if isinstance(c, tuple) else None
        i.dstT = d
        i.srcAB = regs(a) | regs(b)
        return i

    def ds_read(self, op, dst, addr, off=0):
        assert 0 <= off <= 65535, off
        return self.raw(f"{op} {rtxt(dst)}, {rtxt(addr)} offset:{off}", 'ds', regs(dst), regs(addr))

    def ds_write(self, op, addr, src, off=0):
        assert 0 <= off <= 65535, off
        return self.raw(f"{op} {rtxt(addr)}, {rtxt(src)} offset:{off}", 'ds', (), regs(addr) | regs(src))

    def bload(self, dst, voff, srd, soff, off=0, flags='', tag=None, op=None):
        assert 0 <= off <= 4095
        if op is None:
            op = {1: 'buffer_load_dword', 2: 'buffer_load_dwordx2', 4: 'buffer_load_dwordx4'}[dst[2]]
        o = f" offset:{off}" if off else ''
        f = (' ' + flags) if flags else ''
        self.vm_queue.append(tag)
        return self.raw(f"{op} {rtxt(dst)}, {rtxt(voff)}, {rtxt(srd)}, {rtxt(soff)} offen{o}{f}", 'vmem',
                        regs(dst), regs(voff) | regs(srd) | regs(soff))

    def dma(self, voff, srd, soff, off=0, flags='', tag=None):
        assert 0 <= off <= 4095
        o = f" offset:{off}" if off else ''
        f = (' ' + flags) if flags else ''
        self.vm_queue.append(tag)
        return self.raw(f"buffer_load_dwordx4 {rtxt(voff)}, {rtxt(srd)}, {rtxt(soff)} offen{o}{f} lds", 'dma',
                        (), regs(voff) | regs(srd) | regs(soff) | {('m0', 0)})

    def bstore(self, src, voff, srd, soff, off=0, flags='', tag=None):
        assert 0 <= off <= 4095
        op = {1: 'buffer_store_dword', 2: 'buffer_store_dwordx2', 4: 'buffer_store_dwordx4'}[src[2]]
        o = f" offset:{off}" if off else ''
        f = (' ' + flags) if flags else ''
        self.vm_queue.append(tag)
        i = self.raw(f"{op} {rtxt(src)}, {rtxt(voff)}, {rtxt(srd)}, {rtxt(soff)} offen{o}{f}", 'store',
                     (), regs(src) | regs(voff) | regs(srd) | regs(soff))
        if src[2] >= 3:
            i.stdata = regs(src)
        return i

    def vm_wait_for(self, tags):
        last = -1
        for k, t in enumerate(self.vm_queue):
            if t in tags:
                last = k
        n = len(self.vm_queue) - 1 - last
        self.waitcnt(vm=min(n, 63))
        self.vm_queue = self.vm_queue[last + 1:]
        return n

    @staticmethod
    def need(p, c):
        n = 0
        isvalu = lambda x: x.kind in ('valu', 'trans', 'permlane', 'rfl')
        pv = {r for r in p.wr if r[0] == 'v'}
        ps = {r for r in p.wr if r[0] in ('s', 'vcc')}
        if isvalu(p):
            if c.kind == 'mfma' and pv & c.rd:
                n = max(n, 2)
            if c.kind == 'permlane' and pv & c.rd:
                n = max(n, 2)
            if c.kind == 'rfl' and pv & c.rd:
                n = max(n, 1)
            if p.kind == 'trans' and isvalu(c) and c.kind != 'trans' and pv & (c.rd | c.wr):
                n = max(n, 1)
            if ps:
                if isvalu(c) and ps & c.rd:
                    n = max(n, 2)
                if c.kind in ('vmem', 'dma', 'store') and ps & c.rd:
                    n = max(n, 5)
        if p.kind == 'mfma':
            if c.kind == 'mfma':
                if pv & c.srcAB:
                    n = max(n, 8)
                if c.srcC is not None and pv & regs(c.srcC):
                    if c.srcC != p.dstT:
                        n = max(n, 6)
                if pv & c.wr and c.dstT != p.dstT:
                    n = max(n, 6)
            elif isvalu(c) or c.kind in ('ds', 'vmem', 'dma', 'store'):
                if pv & (c.rd | c.wr):
                    n = max(n, 8)
            if p.srcC is not None and isvalu(c) and regs(p.srcC) & c.wr:
                n = max(n, 3)
        if p.kind == 'salu' and ('m0', 0) in p.wr and c.kind == 'dma':
            n = max(n, 1)
        if p.stdata:
            if isvalu(c) and p.stdata & c.wr:
                n = max(n, 2)
            elif p.stdata & c.wr:
                n = max(n, 1)
        return n

    def pad_hazards(self):
        out = []
        for c in self.ins:
            if c.kind in ('comment', 'label'):
                out.append(c)
                continue
            dist = 0
            req = 0
            for p in reversed(out):
                if p.kind in ('comment', 'label'):
                    continue
                nd = self.need(p, c)
                if nd - dist > req:
                    req = nd - dist
                dist += p.nop if p.kind == 'nop' else 1
                if dist >= 10:
                    break
            while req > 0:
                k = min(req, 16)
                i = Ins(f"s_nop {k - 1}", 'nop')
                i.nop = k
                out.append(i)
                req -= k
            out.append(c)
        self.ins = out
        self.check_branches()

    def check_branches(self):
        labels = {i.label: k for k, i in enumerate(self.ins) if i.kind == 'label'}
        for k, b in enumerate(self.ins):
            if b.kind != 'branch':
                continue
            tgt = labels[b.branch]
            tail = [i for i in self.ins[max(0, k - 14):k + 1] if i.kind not in ('comment', 'label')]
            head = [i for i in self.ins[tgt:tgt + 14] if i.kind not in ('comment', 'label')]
            for hi, c in enumerate(head):
                d0 = sum((x.nop if x.kind == 'nop' else 1) for x in head[:hi])
                dist = d0
                for p in reversed(tail):
                    nd = self.need(p, c)
                    assert nd <= dist, f"hazard across branch {b.txt}: {p.txt} -> {c.txt} need {nd} have {dist}"
                    dist += p.nop if p.kind == 'nop' else 1
                if c.kind == 'branch' and c.txt.startswith('s_branch'):
                    break

    def text(self):
        lines = []
        for i in self.ins:
            if i.kind == 'label':
                lines.append(i.txt)
            else:
                lines.append("    " + i.txt)
        return '\n'.join(lines) + '\n'


class E:
    def __init__(self, op, *a):
        self.op = op
        self.a = a

    @staticmethod
    def w(x):
        return x if isinstance(x, E) else E('c', int(x))

    def __add__(s, o): return E('+', s, E.w(o))
    def __radd__(s, o): return E('+', E.w(o), s)
    def __sub__(s, o): return E('-', s, E.w(o))
    def __mul__(s, o): return E('*', s, E.w(o))
    def __rmul__(s, o): return E('*', E.w(o), s)
    def __and__(s, o): return E('&', s, E.w(o))
    def __or__(s, o): return E('|', s, E.w(o))
    def __xor__(s, o): return E('^', s, E.w(o))
    def __lshift__(s, o): return E('<<', s, E.w(o))
    def __rshift__(s, o): return E('>>', s, E.w(o))

    def ev(s, env):
        if s.op == 'c':
            return s.a[0]
        if s.op == 'var':
            return env[s.a[0]]
        x = [q.ev(env) for q in s.a]
        return {'+': lambda: x[0] + x[1], '-': lambda: x[0] - x[1], '*': lambda: x[0] * x[1],
                '&': lambda: x[0] & x[1], '|': lambda: x[0] | x[1], '^': lambda: x[0] ^ x[1],
                '<<': lambda: x[0] << x[1], '>>': lambda: x[0] >> x[1]}[s.op]()


def var(name):
    return E('var', name)


class ECompiler:
    def __init__(self, prog, vars_, temps):
        self.p = prog
        self.vars = vars_
        self.temps = list(temps)

    def _is_s(self, o):
        return isinstance(o, tuple) and o[0] == 's'

    def comp(self, e, dst=None):
        p = self.p
        if e.op == 'c':
            if dst is not None:
                p.valu('v_mov_b32', dst, e.a[0])
                return dst
            return e.a[0]
        if e.op == 'var':
            o = self.vars[e.a[0]]
            if dst is not None:
                p.valu('v_mov_b32', dst, o)
                return dst
            return o
        a = self.comp(e.a[0])
        b = self.comp(e.a[1])
        free = [x for x in (a, b) if isinstance(x, tuple) and x in self.used]
        if dst is None:
            if free:
                dst = free[0]
                free = free[1:]
            else:
                dst = self.temps.pop()
                self.used.add(dst)
        isv = lambda o: isinstance(o, tuple) and o[0] == 'v'

        def tov(o):
            if isv(o):
                return o, None
            t = self.temps.pop()
            p.valu('v_mov_b32', t, o)
            return t, t
        op = e.op
        if op in ('+', '&', '|', '^', '*'):
            name = {'+': 'v_add_u32', '&': 'v_and_b32', '|': 'v_or_b32', '^': 'v_xor_b32', '*': 'v_mul_u32_u24'}[op]
            if not isv(b):
                a, b = b, a
            b, t = tov(b)
            p.valu(name, dst, a, b)
            if t:
                self.temps.append(t)
        elif op == '-':
            if isv(b):
                p.valu('v_sub_u32', dst, a, b)
            else:
                a, t = tov(a)
                p.valu('v_subrev_u32', dst, b, a)
                if t:
                    self.temps.append(t)
        elif op in ('<<', '>>'):
            name = {'<<': 'v_lshlrev_b32', '>>': 'v_lshrrev_b32'}[op]
            a, t = tov(a)
            p.valu(name, dst, b, a)
            if t:
                self.temps.append(t)
        for x in free:
            if x != dst:
                self.used.discard(x)
                self.temps.append(x)
        return dst

    def emit(self, e, dst):
        self.used = set()
        self.comp(e, dst)
        for x in list(self.used):
            if x != dst:
                self.temps.append(x)
        self.used = set()
```

```python
from asmlib import E, var

TILE = 8448
WBASE = 2112
BLK2_K = 1040
BLK2_T = 1056
SIG = [0, 2, 1, 3]

l = var('l')
w = var('w')
i_ = l & 15
g_ = (l >> 4) & 3
r_ = (l >> 2) & 3
c_ = l & 3
u_ = g_
blk = w * 2


def sig(g):
    return ((g & 1) << 1) | (g >> 1)


W_RD = (r_ + ((g_ & 1) << 2)) * 1056 + (g_ >> 1) * 512 + c_ * 8
W_RD2 = 256
V_RD = (r_ + ((g_ & 1) << 2)) * 1056 + (g_ >> 1) * 256 + c_ * 8
V_RD2 = 512
inB = ((i_ + 4) >> 3) & 1
cls = inB * (i_ - 4 * inB) + (inB ^ 1) * ((i_ & 3) + ((i_ >> 3) << 2))
K_RD = cls * 1024 + (cls & 1) * 16 + (cls >> 1) * 64 + inB * 256 + sig(g_) * 16
K_T = 512
K_S = 64

W_ROW = (blk & 3) + ((blk >> 2) << 3) + ((u_ & 1) << 2) + ((u_ >> 1) << 4)
WO_ROW = (blk & 3) + ((blk >> 2) << 4) + ((u_ & 1) << 2) + ((u_ >> 1) << 3)
V_ROW = blk + (u_ << 3)
K_ROW = (u_ & 1) * (blk + 4) + ((u_ & 1) ^ 1) * (blk + ((blk >> 2) << 3)) + ((u_ >> 1) << 4)


def _fill(rowexpr, blk2):
    lds = {}
    for wv in range(4):
        for e in range(2):
            base = wv * WBASE + e * blk2
            for ln in range(64):
                row = rowexpr.ev({'l': ln, 'w': wv}) + e
                a = base + ln * 16
                assert a % 16 == 0 and a + 16 <= TILE
                assert a not in lds
                lds[a] = (row, ln & 15)
    assert sorted(set(v[0] for v in lds.values())) == list(range(32))
    return lds


def _elem(lds, addr):
    row, slot = lds[addr & ~15]
    return row, slot * 8 + (addr & 15) // 2


def _banks_ok(addrs_sizes):
    used = {}
    for a, sz in addrs_sizes:
        for d in range(a // 4, (a + sz) // 4):
            b = d % 64
            if b in used and used[b] != d:
                return False
            used[b] = d
    return True


B128_GROUPS = [
    list(range(0, 4)) + list(range(12, 16)) + list(range(20, 28)),
    list(range(4, 12)) + list(range(16, 20)) + list(range(28, 32)),
    list(range(32, 36)) + list(range(44, 48)) + list(range(52, 60)),
    list(range(36, 44)) + list(range(48, 52)) + list(range(60, 64)),
]


def _tr_read(lds, addr_of_lane):
    out = {}
    for g in range(4):
        for i in range(16):
            res = []
            for r in range(4):
                src = 16 * g + 4 * r + (i >> 2)
                res.append(_elem(lds, addr_of_lane[src] + 2 * (i & 3)))
            out[16 * g + i] = res
    return out


def verify():
    for name, rowexpr, kmap in (('W', W_ROW, lambda g, jj: 8 * g + jj),
                                ('WO', WO_ROW, lambda g, jj: 8 * SIG[g] + jj)):
        lds = _fill(rowexpr, BLK2_T)
        for j in range(8):
            for half in range(2):
                ad = [W_RD.ev({'l': ln}) + 32 * j + half * W_RD2 for ln in range(64)]
                for h in range(2):
                    assert _banks_ok([(ad[x], 8) for x in range(32 * h, 32 * h + 32)]), (name, j, half)
                o = _tr_read(lds, ad)
                for ln in range(64):
                    g, i = ln >> 4, ln & 15
                    for r in range(4):
                        assert o[ln][r] == (kmap(g, half * 4 + r), 16 * j + i), (name, ln, r, o[ln][r])
    lds = _fill(V_ROW, BLK2_T)
    for j in range(8):
        for half in range(2):
            ad = [V_RD.ev({'l': ln}) + 32 * j + half * V_RD2 for ln in range(64)]
            for h in range(2):
                assert _banks_ok([(ad[x], 8) for x in range(32 * h, 32 * h + 32)]), ('V', j, half)
            o = _tr_read(lds, ad)
            for ln in range(64):
                g, i = ln >> 4, ln & 15
                for r in range(4):
                    assert o[ln][r] == (16 * half + 4 * g + r, 16 * j + i)
    lds = _fill(K_ROW, BLK2_K)
    for t in range(2):
        for s in range(4):
            ad = [K_RD.ev({'l': ln}) + t * K_T + s * K_S for ln in range(64)]
            for grp in B128_GROUPS:
                assert _banks_ok([(ad[x], 16) for x in grp]), ('K', t, s)
            for ln in range(64):
                g, i = ln >> 4, ln & 15
                assert ad[ln] % 16 == 0
                assert _elem(lds, ad[ln]) == (16 * t + i, 32 * s + 8 * SIG[g]), (ln, _elem(lds, ad[ln]))
    print("layouts verified")


if __name__ == '__main__':
    verify()
```

```python
import math
import struct
import sys

from asmlib import Prog, V, S, E, var, ECompiler
import layout as L

NAME = 'concat_heads__mha_block_cached__mha_block_cached__near_ridge'
STEP = 2 * L.TILE
RING = 4
LDS_BYTES = RING * STEP
O_UNIT = 13 * 4096
PART_BASE = 0x2000000
PART_UNIT = 13 * 8192


def f32bits(x):
    return struct.unpack('<I', struct.pack('<f', x))[0]


SCALE_C = (128 ** -0.5) * math.log2(math.e)

ACC0 = 128
QF0 = 64
S0 = 32
AB0 = 20
NEGM0 = 16
L0 = 12
vKRD, vVRD, vKD, vVD = V(1), V(2), V(3), V(4)
vWD, vX = V(5), V(6)
T = [V(7), V(8), V(9), V(10), V(11)]


def acc(j, t):
    return V(ACC0 + (j * 4 + t) * 4, 4)


def qf(t, s):
    return V(QF0 + (t * 4 + s) * 4, 4)


def sreg(t, tp):
    return V(S0 + t * 8 + tp * 4, 4)


def preg(t):
    return V(S0 + t * 8, 4)


def abuf(k):
    return V(AB0 + 4 * (k % 3), 4)


def xbuf(n, tau, t):
    return V(32 + (n % 3) * 32 + (tau * 4 + t) * 4, 4)


X_SRD, W_SRD, K_SRD, V_SRD, O_SRD = S(4, 4), S(8, 4), S(12, 4), S(16, 4), S(20, 4)
sW, sWB = S(24), S(25)
sC, sTHR, sCNT, sM0B, sKOFF, sFLAG = S(42), S(43), S(44), S(45), S(46), S(47)
sXT = [0, S(48), S(49), S(50)]
sDELTA, sTMP, sRING, sNC = S(51), S(52), S(53), S(54)


def build_srd(p, srd, base_lo, base_hi, off_lo, nrec):
    n = srd[1]
    p.salu('s_add_u32', S(n), base_lo, off_lo)
    p.salu('s_addc_u32', S(n + 1), base_hi, 0)
    p.salu('s_and_b32', S(n + 1), S(n + 1), 0xffff)
    p.salu('s_mov_b32', S(n + 2), nrec)
    p.salu('s_mov_b32', S(n + 3), 0x20000)


def gemm_step(p, nt, slot_off, xb, first, rd_addr):
    frags = [(tau, j) for tau in range(2) for j in range(8)]

    def issue(k):
        tau, j = frags[k]
        b = abuf(k)
        off = slot_off + tau * L.TILE + 32 * j
        p.ds_read('ds_read_b64_tr_b16', V(b[1], 2), rd_addr, off)
        p.ds_read('ds_read_b64_tr_b16', V(b[1] + 2, 2), rd_addr, off + L.W_RD2)
    for k in range(3):
        issue(k)
    for k, (tau, j) in enumerate(frags):
        rem = min(len(frags) - 1 - k, 2)
        p.waitcnt(lgkm=2 * rem)
        for t in range(nt):
            c = 0 if (first and tau == 0) else acc(j, t)
            p.mfma(acc(j, t), abuf(k), xb(tau, t), c)
        if k + 3 < len(frags):
            issue(k + 3)


def pack_pair(p, dst, a, b, scale=None):
    d = dst[1]
    if scale is not None:
        for k in range(4):
            p.valu('v_mul_f32', V(a[1] + k), V(a[1] + k), scale)
            p.valu('v_mul_f32', V(b[1] + k), V(b[1] + k), scale)
    p.valu('v_cvt_pk_bf16_f32', V(d), V(a[1]), V(a[1] + 1))
    p.valu('v_cvt_pk_bf16_f32', V(d + 1), V(a[1] + 2), V(a[1] + 3))
    p.valu('v_cvt_pk_bf16_f32', V(d + 2), V(b[1]), V(b[1] + 1))
    p.valu('v_cvt_pk_bf16_f32', V(d + 3), V(b[1] + 2), V(b[1] + 3))
    p.valu('v_permlane16_swap_b32', V(d), V(d + 2))
    p.valu('v_permlane16_swap_b32', V(d + 1), V(d + 3))


def xlane_reduce(p, op, x, t1):
    p.valu('v_mov_b32', t1, x)
    p.valu('v_permlane32_swap_b32', x, t1)
    p.valu(op, x, x, t1)
    p.valu('v_mov_b32', t1, x)
    p.valu('v_permlane16_swap_b32', x, t1)
    p.valu(op, x, x, t1)


def dma_kv_static(p, chunk, step):
    so = (step % RING) * STEP
    p.salu('s_mov_b32', sTMP, chunk * 8192)
    p.salu('s_add_u32', 'm0', sWB, so)
    p.dma(vKD, K_SRD, sTMP, tag=('D', step))
    p.salu('s_add_u32', 'm0', sWB, so + L.BLK2_K - 256)
    p.dma(vKD, K_SRD, sTMP, off=256, tag=('D', step))
    p.salu('s_add_u32', 'm0', sWB, so + L.TILE)
    p.dma(vVD, V_SRD, sTMP, tag=('D', step))
    p.salu('s_add_u32', 'm0', sWB, so + L.TILE + L.BLK2_T - 256)
    p.dma(vVD, V_SRD, sTMP, off=256, tag=('D', step))


def dma_w_static(p, step, pitch, srd, voff):
    so = (step % RING) * STEP
    for tau in range(2):
        for e in range(2):
            p.salu('s_add_u32', 'm0', sWB, so + tau * L.TILE + e * L.BLK2_T)
            p.salu('s_mov_b32', sTMP, (64 * step + 32 * tau + e) * pitch)
            p.dma(voff, srd, sTMP, tag=('D', step))


def k1_body(p, nt, sfx):
    p.vm_queue = []

    def xload(step):
        for tau in range(2):
            for t in range(nt):
                p.bload(xbuf(step, tau, t), vX, X_SRD, sXT[t], off=(64 * step + 32 * tau) * 2, tag=('X', step))

    def dma_step(step):
        if step < 8:
            dma_w_static(p, step, 8192, W_SRD, vWD)
        else:
            dma_kv_static(p, step - 8, step)

    dma_step(0)
    xload(0)
    dma_step(1)
    xload(1)
    dma_step(2)
    for s in range(8):
        p.vm_wait_for({('D', s), ('X', s)})
        p.barrier()
        if s + 2 <= 7:
            xload(s + 2)
        dma_step(s + 3)
        gemm_step(p, nt, (s % RING) * STEP, lambda tau, t: xbuf(s, tau, t), s == 0, vKRD)
    for t in range(nt):
        for s in range(4):
            pack_pair(p, qf(t, s), acc(2 * s, t), acc(2 * s + 1, t))
    ec = ECompiler(p, {'l': V(0)}, T[:])
    ec.emit(L.K_RD, vKRD)
    for t in range(nt):
        p.valu('v_mov_b32', V(NEGM0 + t), 0x7f800000)
        p.valu('v_mov_b32', V(L0 + t), 0)
    p.salu('s_mov_b32', sCNT, 0)
    p.salu('s_mov_b32', S(62), STEP)
    p.salu('s_mov_b32', sFLAG, 1)
    p.salu('s_mov_b32', sKOFF, 3 * 8192)
    p.salu('s_mov_b32', sRING, 3 * STEP)
    assert len(p.vm_queue) == 12, p.vm_queue

    p.label(f'chunk_top{sfx}')
    p.waitcnt(vm=8)
    p.barrier()
    p.salu('s_add_u32', sM0B, sRING, sWB)
    p.salu('s_mov_b32', 'm0', sM0B)
    p.salu('s_add_u32', sRING, sRING, STEP)
    p.dma(vKD, K_SRD, sKOFF)
    p.salu('s_add_u32', 'm0', sM0B, L.BLK2_K - 256)
    p.scmp('s_cmp_eq_u32', sRING, RING * STEP)
    p.dma(vKD, K_SRD, sKOFF, off=256)
    p.salu('s_cselect_b32', sRING, 0, sRING)
    p.salu('s_add_u32', 'm0', sM0B, L.TILE)
    p.salu('s_and_b32', sTMP, sCNT, 3)
    p.dma(vVD, V_SRD, sKOFF)
    p.salu('s_add_u32', 'm0', sM0B, L.TILE + L.BLK2_T - 256)
    p.scmp('s_cmp_eq_u32', sTMP, 3)
    p.dma(vVD, V_SRD, sKOFF, off=256)
    p.salu('s_cselect_b32', sDELTA, -3 * STEP, S(62))
    p.salu('s_add_u32', sKOFF, sKOFF, 8192)

    p.label(f'qk_start{sfx}')
    kfr = [(tp, s) for tp in range(2) for s in range(4)]

    def kissue(k):
        tp, s = kfr[k]
        p.ds_read('ds_read_b128', abuf(k), vKRD, tp * L.K_T + s * L.K_S)
    for k in range(3):
        kissue(k)
    for k, (tp, s) in enumerate(kfr):
        p.waitcnt(lgkm=min(7 - k, 2))
        for t in range(nt):
            p.mfma(sreg(t, tp), abuf(k), qf(t, s), 0 if s == 0 else sreg(t, tp))
        if k + 3 < 8:
            kissue(k + 3)
    p.scmp('s_cmp_eq_u32', sFLAG, 1)
    p.branch('s_cbranch_scc1', f'rescale{sfx}')
    p.label(f'softmax{sfx}')
    p.nop(7)
    for tp in range(2):
        for t in range(nt):
            for r in range(4):
                x = V(sreg(t, tp)[1] + r)
                p.valu('v_fma_f32', x, x, sC, V(NEGM0 + t))
            for r in range(4):
                x = V(sreg(t, tp)[1] + r)
                p.valu('v_exp_f32', x, x)
    for t in range(nt):
        b = S0 + t * 8
        p.valu('v_add_f32', T[t], V(b), V(b + 1))
        p.valu('v_add_f32', T[4], V(b + 2), V(b + 3))
        p.valu('v_add_f32', T[t], T[t], V(b + 4))
        p.valu('v_add_f32', T[4], T[4], V(b + 5))
        p.valu('v_add_f32', T[t], T[t], V(b + 6))
        p.valu('v_add_f32', T[4], T[4], V(b + 7))
        p.valu('v_add_f32', T[t], T[t], T[4])
    p.valu('v_max3_f32', T[4], T[0], T[1], T[2])
    if nt == 4:
        p.valu('v_max_f32', T[4], T[4], T[3])
    p.valu('v_cmp_nge_f32', 'vcc', sTHR, T[4])
    p.branch('s_cbranch_vccnz', f'redo{sfx}')
    p.label(f'cont{sfx}')
    p.salu('s_mov_b32', sFLAG, 0)

    def vissue(k):
        b = abuf(k)
        p.ds_read('ds_read_b64_tr_b16', V(b[1], 2), vVRD, L.TILE + 32 * k)
        p.ds_read('ds_read_b64_tr_b16', V(b[1] + 2, 2), vVRD, L.TILE + 32 * k + L.V_RD2)
    for k in range(3):
        vissue(k)
    for t in range(nt):
        p.valu('v_add_f32', V(L0 + t), V(L0 + t), T[t])
        b = S0 + t * 8
        for k in range(4):
            p.valu('v_cvt_pk_bf16_f32', V(b + k), V(b + 2 * k), V(b + 2 * k + 1))
    for j in range(8):
        p.waitcnt(lgkm=2 * min(7 - j, 2))
        for t in range(nt):
            p.mfma(acc(j, t), abuf(j), preg(t), acc(j, t))
        if j + 3 < 8:
            vissue(j + 3)
    p.valu('v_add_u32', vKRD, sDELTA, vKRD)
    p.valu('v_add_u32', vVRD, sDELTA, vVRD)
    p.salu('s_add_u32', sCNT, sCNT, 1)
    p.scmp('s_cmp_lt_u32', sCNT, 16)
    p.branch('s_cbranch_scc1', f'chunk_top{sfx}')

    p.valu('v_and_b32', T[0], 63, V(0))
    p.valu('v_lshlrev_b32', T[0], 4, T[0])
    p.valu('v_add_u32', T[0], S(26), T[0])
    for t in range(nt):
        xlane_reduce(p, 'v_add_f32', V(L0 + t), T[1])
        p.valu('v_rcp_f32', V(L0 + t), V(L0 + t))
    for t in range(nt):
        p.salu('s_mov_b32', sTMP, t * 4096)
        for s in range(4):
            d = qf(t, s)
            pack_pair(p, d, acc(2 * s, t), acc(2 * s + 1, t), scale=V(L0 + t))
            p.bstore(d, T[0], O_SRD, sTMP, off=s * 1024)
    p.raw('s_endpgm')

    p.label(f'redo{sfx}')
    p.scmp('s_cmp_eq_u32', sFLAG, 2)
    p.branch('s_cbranch_scc1', f'cont{sfx}')
    p.salu('s_mov_b32', sFLAG, 1)
    p.branch('s_branch', f'qk_start{sfx}')

    p.label(f'rescale{sfx}')
    p.nop(7)
    for t in range(nt):
        b = S0 + t * 8
        p.valu('v_max3_f32', T[0], V(b), V(b + 1), V(b + 2))
        p.valu('v_max3_f32', T[1], V(b + 3), V(b + 4), V(b + 5))
        p.valu('v_max3_f32', T[0], T[0], V(b + 6), V(b + 7))
        p.valu('v_max_f32', T[0], T[0], T[1])
        xlane_reduce(p, 'v_max_f32', T[0], T[1])
        p.valu('v_mul_f32', T[0], sNC, T[0])
        p.valu('v_min_f32', T[0], V(NEGM0 + t), T[0])
        p.valu('v_sub_f32', T[1], T[0], V(NEGM0 + t))
        p.valu('v_exp_f32', T[1], T[1])
        p.valu('v_mov_b32', V(NEGM0 + t), T[0])
        p.valu('v_mul_f32', V(L0 + t), V(L0 + t), T[1])
        for j in range(8):
            for r in range(4):
                a = V(acc(j, t)[1] + r)
                p.valu('v_mul_f32', a, a, T[1])
    p.salu('s_mov_b32', sFLAG, 2)
    p.branch('s_branch', f'softmax{sfx}')


def wave_setup(p):
    p.valu('v_lshrrev_b32', T[0], 6, V(0))
    p.valu('v_readfirstlane_b32', sW, T[0])
    p.valu('v_and_b32', V(0), 63, V(0))
    p.salu('s_mul_i32', sWB, sW, L.WBASE)
    p.salu('s_mul_i32', S(27), sW, 3)
    p.salu('s_add_u32', S(27), S(27), 1)
    p.scmp('s_cmp_eq_u32', sW, 0)
    p.salu('s_cselect_b32', S(27), 0, S(27))
    p.salu('s_lshl_b32', S(26), S(27), 12)


def gen_k1():
    p = Prog()
    p.scmp('s_cmp_ge_u32', S(2), 512)
    p.branch('s_cbranch_scc1', 'k1_end')
    p.salu('s_and_b32', S(28), S(2), 7)
    p.salu('s_lshr_b32', S(29), S(2), 3)
    p.salu('s_lshr_b32', S(55), S(28), 2)
    p.salu('s_and_b32', S(56), S(28), 3)
    p.salu('s_lshl_b32', S(56), S(56), 3)
    p.salu('s_and_b32', S(57), S(29), 7)
    p.salu('s_add_u32', S(56), S(56), S(57))
    p.salu('s_lshr_b32', S(57), S(29), 3)
    p.salu('s_mul_i32', S(58), S(55), 40)
    p.salu('s_add_u32', S(30), S(0), S(58))
    p.salu('s_addc_u32', S(31), S(1), 0)
    p.sload('s_load_dwordx8', S(32, 8), S(30, 2), 0)
    p.sload('s_load_dwordx2', S(40, 2), S(0, 2), 96)
    wave_setup(p)
    p.salu('s_mov_b32', sC, f32bits(SCALE_C))
    p.salu('s_mov_b32', sNC, f32bits(-SCALE_C))
    p.salu('s_mov_b32', sTHR, f32bits(4096.0))
    p.salu('s_mov_b32', sXT[1], 16384)
    p.salu('s_mov_b32', sXT[2], 32768)
    p.salu('s_mov_b32', sXT[3], 49152)
    ec = ECompiler(p, {'l': V(0), 'w': sW, 't0': S(27)}, T[:])
    l = var('l')
    ec.emit(L.W_RD, vKRD)
    ec.emit(L.V_RD, vVRD)
    ec.emit(L.K_ROW * 256 + (l & 15) * 16, vKD)
    ec.emit(L.V_ROW * 256 + (l & 15) * 16, vVD)
    ec.emit(L.W_ROW * 8192 + (l & 15) * 16, vWD)
    ec.emit(((var('t0') << 4) + (l & 15)) * 1024 + (l >> 4) * 16, vX)
    p.waitcnt(lgkm=0)
    p.salu('s_mul_i32', S(58), S(57), 212992)
    build_srd(p, X_SRD, S(32), S(33), S(58), 212992)
    p.salu('s_lshl_b32', S(58), S(57), 5)
    p.salu('s_add_u32', S(58), S(58), S(56))
    p.salu('s_lshl_b32', S(59), S(58), 17)
    build_srd(p, K_SRD, S(34), S(35), S(59), 131072)
    build_srd(p, V_SRD, S(36), S(37), S(59), 131072)
    p.salu('s_lshl_b32', S(59), S(56), 8)
    p.salu('s_sub_u32', S(60), 512 * 8192, S(59))
    build_srd(p, W_SRD, S(38), S(39), S(59), S(60))
    p.salu('s_lshl_b32', S(59), S(55), 8)
    p.salu('s_add_u32', S(58), S(58), S(59))
    p.salu('s_mul_i32', S(58), S(58), O_UNIT)
    build_srd(p, O_SRD, S(40), S(41), S(58), O_UNIT)
    p.scmp('s_cmp_eq_u32', sW, 0)
    p.branch('s_cbranch_scc0', 'k1_nt3')
    k1_body(p, 4, '_4')
    p.label('k1_nt3')
    k1_body(p, 3, '_3')
    p.label('k1_end')
    p.raw('s_endpgm')
    p.pad_hazards()
    return p


def k2_body(p, nt, sfx):
    p.vm_queue = []
    NS = 16

    def xload(step):
        for tau in range(2):
            kap = 2 * step + tau
            for t in range(nt):
                p.salu('s_mov_b32', sTMP, (kap >> 2) * O_UNIT + t * 4096)
                p.bload(xbuf(step, tau, t), vX, X_SRD, sTMP, off=(kap & 3) * 1024, tag=('X', step))

    def dma_step(step):
        if step < NS:
            dma_w_static(p, step, 1024, W_SRD, vWD)

    dma_step(0)
    xload(0)
    dma_step(1)
    xload(1)
    dma_step(2)
    for s in range(NS):
        p.vm_wait_for({('D', s), ('X', s)})
        p.barrier()
        if s + 2 < NS:
            xload(s + 2)
        dma_step(s + 3)
        gemm_step(p, nt, (s % RING) * STEP, lambda tau, t: xbuf(s, tau, t), s == 0, vKRD)
    p.valu('v_lshlrev_b32', T[0], 4, V(0))
    p.salu('s_lshl_b32', S(26), S(27), 13)
    p.valu('v_add_u32', T[0], S(26), T[0])
    for t in range(nt):
        for jh in range(2):
            p.salu('s_mov_b32', sTMP, t * 8192 + jh * 4096)
            for jj in range(4):
                p.bstore(acc(jh * 4 + jj, t), T[0], O_SRD, sTMP, off=jj * 1024)
    p.raw('s_endpgm')


def gen_k2():
    p = Prog()
    p.scmp('s_cmp_ge_u32', S(2), 256)
    p.branch('s_cbranch_scc1', 'k2_end')
    p.salu('s_and_b32', S(28), S(2), 7)
    p.salu('s_lshr_b32', S(29), S(2), 3)
    p.salu('s_lshr_b32', S(55), S(28), 2)
    p.salu('s_and_b32', S(56), S(28), 3)
    p.salu('s_lshr_b32', S(57), S(29), 2)
    p.salu('s_and_b32', S(61), S(29), 3)
    p.salu('s_mul_i32', S(58), S(55), 40)
    p.salu('s_add_u32', S(30), S(0), S(58))
    p.salu('s_addc_u32', S(31), S(1), 0)
    p.sload('s_load_dwordx2', S(32, 2), S(30, 2), 32)
    p.sload('s_load_dwordx2', S(40, 2), S(0, 2), 96)
    wave_setup(p)
    ec = ECompiler(p, {'l': V(0), 'w': sW, 't0': S(27)}, T[:])
    l = var('l')
    ec.emit(L.W_RD, vKRD)
    ec.emit(L.WO_ROW * 1024 + (l & 15) * 16, vWD)
    ec.emit((var('t0') << 12) + l * 16, vX)
    p.waitcnt(lgkm=0)
    p.salu('s_lshl_b32', S(58), S(55), 3)
    p.salu('s_add_u32', S(58), S(58), S(57))
    p.salu('s_lshl_b32', S(59), S(58), 5)
    p.salu('s_lshl_b32', S(60), S(56), 3)
    p.salu('s_add_u32', S(59), S(59), S(60))
    p.salu('s_mul_i32', S(59), S(59), O_UNIT)
    build_srd(p, X_SRD, S(40), S(41), S(59), 8 * O_UNIT)
    p.salu('s_lshl_b32', S(59), S(56), 20)
    p.salu('s_lshl_b32', S(60), S(61), 8)
    p.salu('s_add_u32', S(59), S(59), S(60))
    p.salu('s_sub_u32', S(60), 1 << 20, S(60))
    build_srd(p, W_SRD, S(32), S(33), S(59), S(60))
    p.salu('s_lshl_b32', S(59), S(56), 4)
    p.salu('s_add_u32', S(59), S(59), S(58))
    p.salu('s_lshl_b32', S(59), S(59), 2)
    p.salu('s_add_u32', S(59), S(59), S(61))
    p.salu('s_mul_i32', S(59), S(59), PART_UNIT)
    p.salu('s_add_u32', S(59), S(59), PART_BASE)
    build_srd(p, O_SRD, S(40), S(41), S(59), PART_UNIT)
    p.scmp('s_cmp_eq_u32', sW, 0)
    p.branch('s_cbranch_scc0', 'k2_nt3')
    k2_body(p, 4, '_4')
    p.label('k2_nt3')
    k2_body(p, 3, '_3')
    p.label('k2_end')
    p.raw('s_endpgm')
    p.pad_hazards()
    return p


def gen_k3():
    p = Prog()
    p.scmp('s_cmp_ge_u32', S(2), 832)
    p.branch('s_cbranch_scc1', 'k3_end')
    p.sload('s_load_dwordx2', S(40, 2), S(0, 2), 96)
    p.sload('s_load_dwordx2', S(32, 2), S(0, 2), 80)
    p.salu('s_mul_hi_u32', S(28), S(2), 0x4EC4EC4F)
    p.salu('s_lshr_b32', S(28), S(28), 2)
    p.salu('s_mul_i32', S(29), S(28), 13)
    p.salu('s_sub_u32', S(29), S(2), S(29))
    p.valu('v_lshrrev_b32', T[0], 6, V(0))
    p.valu('v_readfirstlane_b32', sW, T[0])
    p.valu('v_and_b32', V(0), 63, V(0))
    p.salu('s_mul_i32', S(30), S(28), PART_UNIT)
    p.salu('s_lshl_b32', S(31), S(29), 13)
    p.salu('s_add_u32', S(30), S(30), S(31))
    p.salu('s_lshl_b32', S(31), sW, 11)
    p.salu('s_add_u32', S(30), S(30), S(31))
    p.valu('v_lshlrev_b32', V(1), 4, V(0))
    p.valu('v_add_u32', V(1), S(30), V(1))
    p.waitcnt(lgkm=0)
    build_srd(p, X_SRD, S(40), S(41), PART_BASE, 256 * PART_UNIT)
    build_srd(p, O_SRD, S(32), S(33), 0, 8 * 208 * 1024 * 2)
    for kq in range(4):
        p.salu('s_mov_b32', sTMP, kq * 64 * PART_UNIT)
        p.bload(V(32 + kq * 8, 4), V(1), X_SRD, sTMP)
        p.bload(V(36 + kq * 8, 4), V(1), X_SRD, sTMP, off=1024)
    p.salu('s_lshr_b32', S(55), S(28), 5)
    p.salu('s_lshr_b32', S(57), S(28), 2)
    p.salu('s_and_b32', S(57), S(57), 7)
    p.salu('s_and_b32', S(61), S(28), 3)
    p.salu('s_mul_i32', S(58), S(57), 208)
    p.salu('s_lshl_b32', S(59), S(29), 4)
    p.salu('s_add_u32', S(58), S(58), S(59))
    p.salu('s_lshl_b32', S(58), S(58), 11)
    p.salu('s_lshl_b32', S(59), S(55), 10)
    p.salu('s_add_u32', S(58), S(58), S(59))
    p.salu('s_lshl_b32', S(59), S(61), 8)
    p.salu('s_add_u32', S(58), S(58), S(59))
    p.salu('s_lshl_b32', S(59), sW, 6)
    p.salu('s_add_u32', S(58), S(58), S(59))
    ec = ECompiler(p, {'l': V(0), 'base': S(58)}, T[:])
    l = var('l')
    ec.emit(var('base') + (l & 15) * 2048 + L.sig(l >> 4) * 16, V(2))
    p.waitcnt(vm=0)
    for k in range(8):
        p.valu('v_add_f32', V(32 + k), V(32 + k), V(40 + k))
        p.valu('v_add_f32', V(48 + k), V(48 + k), V(56 + k))
    for k in range(8):
        p.valu('v_add_f32', V(32 + k), V(32 + k), V(48 + k))
    pack_pair(p, V(20, 4), V(32, 4), V(36, 4))
    p.bstore(V(20, 4), V(2), O_SRD, 0)
    p.label('k3_end')
    p.raw('s_endpgm')
    p.pad_hazards()
    return p


HEADER = open(f'cdna_kernels/{NAME}.s.ref').read().split('; Override launch geometry')[0]


def kernel_text(name, prog, vgprs, sgprs=102):
    return f""".text
.globl {name}
.p2align 8
.type {name},@function
{name}:
{prog.text()}
.section .rodata,"a"
.p2align 6
.amdhsa_kernel {name}
  .amdhsa_next_free_vgpr {vgprs}
  .amdhsa_next_free_sgpr {sgprs}
  .amdhsa_accum_offset {(vgprs + 3) // 4 * 4}
  .amdhsa_group_segment_fixed_size 0
  .amdhsa_kernarg_size 104
  .amdhsa_user_sgpr_count 2
  .amdhsa_user_sgpr_kernarg_segment_ptr 1
  .amdhsa_system_sgpr_workgroup_id_x 1
.end_amdhsa_kernel
"""


def main(out):
    L.verify()
    k1, k2, k3 = gen_k1(), gen_k2(), gen_k3()
    txt = HEADER
    txt += f"; @launch kernel=attn_kernel grid=(512,1,1) block=(256,1,1) lds={LDS_BYTES}\n"
    txt += f"; @launch kernel=oproj_kernel grid=(256,1,1) block=(256,1,1) lds={LDS_BYTES}\n"
    txt += f"; @launch kernel=reduce_kernel grid=(832,1,1) block=(256,1,1) lds=0\n"
    txt += '.amdgcn_target "amdgcn-amd-amdhsa--gfx950"\n'
    txt += kernel_text('attn_kernel', k1, 256)
    txt += kernel_text('oproj_kernel', k2, 256)
    txt += kernel_text('reduce_kernel', k3, 64)
    open(out, 'w').write(txt)
    print("wrote", out, len(txt))


if __name__ == '__main__':
    main(sys.argv[1] if len(sys.argv) > 1 else f'cdna_kernels/{NAME}.s')
```

```python
import re


def V(n, cnt=1):
    return ('v', n, cnt)


def S(n, cnt=1):
    return ('s', n, cnt)


def rtxt(r):
    if isinstance(r, tuple):
        f, n, c = r
        if c == 1:
            return f"{f}{n}"
        return f"{f}[{n}:{n + c - 1}]"
    if isinstance(r, float):
        return repr(r)
    if isinstance(r, int):
        if -16 <= r <= 64:
            return str(r)
        return hex(r & 0xffffffff)
    return str(r)


def regs(r):
    if isinstance(r, tuple):
        f, n, c = r
        return {(f, n + i) for i in range(c)}
    if r in ('vcc', 'm0', 'exec', 'scc'):
        return {(r, 0)}
    return set()


TRANS = ('v_exp_f32', 'v_log_f32', 'v_rcp_f32', 'v_rsq_f32', 'v_sqrt_f32')


class Ins:
    __slots__ = ('txt', 'kind', 'wr', 'rd', 'srcC', 'dstT', 'srcAB', 'nop', 'label', 'stdata', 'branch')

    def __init__(self, txt, kind, wr=(), rd=()):
        self.txt = txt
        self.kind = kind
        self.wr = set(wr)
        self.rd = set(rd)
        self.srcC = None
        self.dstT = None
        self.srcAB = set()
        self.nop = 0
        self.label = None
        self.stdata = set()
        self.branch = None


class Prog:
    def __init__(self):
        self.ins = []
        self.nomem = 0
        self.nox = 0
        self.vm_queue = []

    def raw(self, txt, kind='other', wr=(), rd=()):
        i = Ins(txt, kind, wr, rd)
        self.ins.append(i)
        return i

    def comment(self, t):
        self.raw("; " + t, 'comment')

    def label(self, name):
        i = self.raw(name + ":", 'label')
        i.label = name

    def nop(self, k=0):
        i = self.raw(f"s_nop {k}", 'nop')
        i.nop = k + 1

    def salu(self, op, dst, *srcs):
        wr = regs(dst) | {('scc', 0)}
        rd = set()
        for s in srcs:
            rd |= regs(s)
        ops = ', '.join(rtxt(x) for x in (dst,) + srcs)
        return self.raw(f"{op} {ops}", 'salu', wr, rd)

    def scmp(self, op, a, b):
        return self.raw(f"{op} {rtxt(a)}, {rtxt(b)}", 'salu', {('scc', 0)}, regs(a) | regs(b))

    def branch(self, op, lab):
        i = self.raw(f"{op} {lab}", 'branch')
        i.branch = lab
        return i

    def waitcnt(self, vm=None, lgkm=None):
        p = []
        if vm is not None:
            assert 0 <= vm <= 63
            p.append(f"vmcnt({vm})")
        if lgkm is not None:
            assert 0 <= lgkm <= 15
            p.append(f"lgkmcnt({lgkm})")
        self.raw("s_waitcnt " + ' '.join(p), 'other')

    def barrier(self):
        self.raw("s_barrier", 'other')

    def sload(self, op, dst, base, off):
        return self.raw(f"{op} {rtxt(dst)}, {rtxt(base)}, {rtxt(off)}", 'smem', regs(dst), regs(base))

    def valu(self, op, dst, *srcs, mods=''):
        wr = regs(dst)
        rd = set()
        for s in srcs:
            rd |= regs(s)
        kind = 'valu'
        if op in TRANS:
            kind = 'trans'
        if op.startswith('v_permlane'):
            kind = 'permlane'
            wr |= regs(srcs[0])
            rd |= regs(dst)
        if op in ('v_readfirstlane_b32', 'v_readlane_b32'):
            kind = 'rfl'
        if op in ('v_fmac_f32',):
            rd |= regs(dst)
        if op.startswith('v_cndmask') and len(srcs) == 2:
            rd |= {('vcc', 0)}
        ops = ', '.join(rtxt(x) for x in (dst,) + srcs)
        if op.startswith('v_cndmask') and len(srcs) == 2:
            ops += ', vcc'
        return self.raw(f"{op} {ops}{(' ' + mods) if mods else ''}", kind, wr, rd)

    def mfma(self, d, a, b, c):
        rd = regs(a) | regs(b) | regs(c)
        i = self.raw(f"v_mfma_f32_16x16x32_bf16 {rtxt(d)}, {rtxt(a)}, {rtxt(b)}, {rtxt(c)}", 'mfma', regs(d), rd)
        i.srcC = c if isinstance(c, tuple) else None
        i.dstT = d
        i.srcAB = regs(a) | regs(b)
        return i

    def ds_read(self, op, dst, addr, off=0):
        assert 0 <= off <= 65535, off
        return self.raw(f"{op} {rtxt(dst)}, {rtxt(addr)} offset:{off}", 'ds', regs(dst), regs(addr))

    def ds_write(self, op, addr, src, off=0):
        assert 0 <= off <= 65535, off
        return self.raw(f"{op} {rtxt(addr)}, {rtxt(src)} offset:{off}", 'ds', (), regs(addr) | regs(src))

    def bload(self, dst, voff, srd, soff, off=0, flags='', tag=None, op=None):
        assert 0 <= off <= 4095
        if op is None:
            op = {1: 'buffer_load_dword', 2: 'buffer_load_dwordx2', 4: 'buffer_load_dwordx4'}[dst[2]]
        o = f" offset:{off}" if off else ''
        f = (' ' + flags) if flags else ''
        self.vm_queue.append(tag)
        if self.nomem or self.nox:
            return None
        return self.raw(f"{op} {rtxt(dst)}, {rtxt(voff)}, {rtxt(srd)}, {rtxt(soff)} offen{o}{f}", 'vmem',
                        regs(dst), regs(voff) | regs(srd) | regs(soff))

    def dma(self, voff, srd, soff, off=0, flags='', tag=None):
        assert 0 <= off <= 4095
        o = f" offset:{off}" if off else ''
        f = (' ' + flags) if flags else ''
        self.vm_queue.append(tag)
        if self.nomem:
            return None
        return self.raw(f"buffer_load_dwordx4 {rtxt(voff)}, {rtxt(srd)}, {rtxt(soff)} offen{o}{f} lds", 'dma',
                        (), regs(voff) | regs(srd) | regs(soff) | {('m0', 0)})

    def bstore(self, src, voff, srd, soff, off=0, flags='', tag=None):
        assert 0 <= off <= 4095
        op = {1: 'buffer_store_dword', 2: 'buffer_store_dwordx2', 4: 'buffer_store_dwordx4'}[src[2]]
        o = f" offset:{off}" if off else ''
        f = (' ' + flags) if flags else ''
        self.vm_queue.append(tag)
        i = self.raw(f"{op} {rtxt(src)}, {rtxt(voff)}, {rtxt(srd)}, {rtxt(soff)} offen{o}{f}", 'store',
                     (), regs(src) | regs(voff) | regs(srd) | regs(soff))
        if src[2] >= 3:
            i.stdata = regs(src)
        return i

    def vm_wait_for(self, tags):
        last = -1
        for k, t in enumerate(self.vm_queue):
            if t in tags:
                last = k
        n = len(self.vm_queue) - 1 - last
        self.waitcnt(vm=min(n, 63))
        self.vm_queue = self.vm_queue[last + 1:]
        return n

    @staticmethod
    def need(p, c):
        n = 0
        isvalu = lambda x: x.kind in ('valu', 'trans', 'permlane', 'rfl')
        pv = {r for r in p.wr if r[0] == 'v'}
        ps = {r for r in p.wr if r[0] in ('s', 'vcc')}
        if isvalu(p):
            if c.kind == 'mfma' and pv & c.rd:
                n = max(n, 2)
            if c.kind == 'permlane' and pv & c.rd:
                n = max(n, 2)
            if c.kind == 'rfl' and pv & c.rd:
                n = max(n, 1)
            if p.kind == 'trans' and isvalu(c) and c.kind != 'trans' and pv & (c.rd | c.wr):
                n = max(n, 1)
            if ps:
                if isvalu(c) and ps & c.rd:
                    n = max(n, 2)
                if c.kind in ('vmem', 'dma', 'store') and ps & c.rd:
                    n = max(n, 5)
        if p.kind == 'mfma':
            if c.kind == 'mfma':
                if pv & c.srcAB:
                    n = max(n, 8)
                if c.srcC is not None and pv & regs(c.srcC):
                    if c.srcC != p.dstT:
                        n = max(n, 6)
                if pv & c.wr and c.dstT != p.dstT:
                    n = max(n, 6)
            elif isvalu(c) or c.kind in ('ds', 'vmem', 'dma', 'store'):
                if pv & (c.rd | c.wr):
                    n = max(n, 8)
            if p.srcC is not None and isvalu(c) and regs(p.srcC) & c.wr:
                n = max(n, 3)
        if p.kind == 'salu' and ('m0', 0) in p.wr and c.kind == 'dma':
            n = max(n, 1)
        if p.stdata:
            if isvalu(c) and p.stdata & c.wr:
                n = max(n, 2)
            elif p.stdata & c.wr:
                n = max(n, 1)
        return n

    def pad_hazards(self):
        out = []
        for c in self.ins:
            if c.kind in ('comment', 'label'):
                out.append(c)
                continue
            dist = 0
            req = 0
            for p in reversed(out):
                if p.kind in ('comment', 'label'):
                    continue
                nd = self.need(p, c)
                if nd - dist > req:
                    req = nd - dist
                dist += p.nop if p.kind == 'nop' else 1
                if dist >= 10:
                    break
            while req > 0:
                k = min(req, 16)
                i = Ins(f"s_nop {k - 1}", 'nop')
                i.nop = k
                out.append(i)
                req -= k
            out.append(c)
        self.ins = out
        self.check_branches()

    def check_branches(self):
        labels = {i.label: k for k, i in enumerate(self.ins) if i.kind == 'label'}
        for k, b in enumerate(self.ins):
            if b.kind != 'branch':
                continue
            tgt = labels[b.branch]
            tail = [i for i in self.ins[max(0, k - 14):k + 1] if i.kind not in ('comment', 'label')]
            head = [i for i in self.ins[tgt:tgt + 14] if i.kind not in ('comment', 'label')]
            for hi, c in enumerate(head):
                d0 = sum((x.nop if x.kind == 'nop' else 1) for x in head[:hi])
                dist = d0
                for p in reversed(tail):
                    nd = self.need(p, c)
                    assert nd <= dist, f"hazard across branch {b.txt}: {p.txt} -> {c.txt} need {nd} have {dist}"
                    dist += p.nop if p.kind == 'nop' else 1
                if c.kind == 'branch' and c.txt.startswith('s_branch'):
                    break

    def text(self):
        lines = []
        for i in self.ins:
            if i.kind == 'label':
                lines.append(i.txt)
            else:
                lines.append("    " + i.txt)
        return '\n'.join(lines) + '\n'


class E:
    def __init__(self, op, *a):
        self.op = op
        self.a = a

    @staticmethod
    def w(x):
        return x if isinstance(x, E) else E('c', int(x))

    def __add__(s, o): return E('+', s, E.w(o))
    def __radd__(s, o): return E('+', E.w(o), s)
    def __sub__(s, o): return E('-', s, E.w(o))
    def __rsub__(s, o): return E('-', E.w(o), s)
    def __mul__(s, o): return E('*', s, E.w(o))
    def __rmul__(s, o): return E('*', E.w(o), s)
    def __and__(s, o): return E('&', s, E.w(o))
    def __or__(s, o): return E('|', s, E.w(o))
    def __xor__(s, o): return E('^', s, E.w(o))
    def __lshift__(s, o): return E('<<', s, E.w(o))
    def __rshift__(s, o): return E('>>', s, E.w(o))

    def ev(s, env):
        if s.op == 'c':
            return s.a[0]
        if s.op == 'var':
            return env[s.a[0]]
        x = [q.ev(env) for q in s.a]
        return {'+': lambda: x[0] + x[1], '-': lambda: x[0] - x[1], '*': lambda: x[0] * x[1],
                '&': lambda: x[0] & x[1], '|': lambda: x[0] | x[1], '^': lambda: x[0] ^ x[1],
                '<<': lambda: x[0] << x[1], '>>': lambda: x[0] >> x[1]}[s.op]()


def var(name):
    return E('var', name)


class ECompiler:
    def __init__(self, prog, vars_, temps):
        self.p = prog
        self.vars = vars_
        self.temps = list(temps)

    def _is_s(self, o):
        return isinstance(o, tuple) and o[0] == 's'

    def comp(self, e, dst=None):
        p = self.p
        if e.op == 'c':
            if dst is not None:
                p.valu('v_mov_b32', dst, e.a[0])
                return dst
            return e.a[0]
        if e.op == 'var':
            o = self.vars[e.a[0]]
            if dst is not None:
                p.valu('v_mov_b32', dst, o)
                return dst
            return o
        a = self.comp(e.a[0])
        b = self.comp(e.a[1])
        free = [x for x in (a, b) if isinstance(x, tuple) and x in self.used]
        if dst is None:
            if free:
                dst = free[0]
                free = free[1:]
            else:
                dst = self.temps.pop()
                self.used.add(dst)
        isv = lambda o: isinstance(o, tuple) and o[0] == 'v'

        def tov(o):
            if isv(o):
                return o, None
            t = self.temps.pop()
            p.valu('v_mov_b32', t, o)
            return t, t
        op = e.op
        if op in ('+', '&', '|', '^', '*'):
            name = {'+': 'v_add_u32', '&': 'v_and_b32', '|': 'v_or_b32', '^': 'v_xor_b32', '*': 'v_mul_u32_u24'}[op]
            if not isv(b):
                a, b = b, a
            b, t = tov(b)
            p.valu(name, dst, a, b)
            if t:
                self.temps.append(t)
        elif op == '-':
            if isv(b):
                p.valu('v_sub_u32', dst, a, b)
            else:
                a, t = tov(a)
                p.valu('v_subrev_u32', dst, b, a)
                if t:
                    self.temps.append(t)
        elif op in ('<<', '>>'):
            name = {'<<': 'v_lshlrev_b32', '>>': 'v_lshrrev_b32'}[op]
            a, t = tov(a)
            p.valu(name, dst, b, a)
            if t:
                self.temps.append(t)
        for x in free:
            if x != dst:
                self.used.discard(x)
                self.temps.append(x)
        return dst

    def emit(self, e, dst):
        self.used = set()
        self.comp(e, dst)
        for x in list(self.used):
            if x != dst:
                self.temps.append(x)
        self.used = set()
```

```python
import math
import struct
import sys

from asmlib import Prog, V, S, E, var, ECompiler
import layout as L

NAME = 'concat_heads__mha_block_cached__mha_block_cached__near_ridge'
STEP = 2 * L.TILE
RING = 4
LDS_BYTES = RING * STEP
LDS_K1 = RING * STEP + 13312
O_UNIT = 13 * 4096
PART_BASE = 0x2000000
PART_UNIT = 13 * 8192


def f32bits(x):
    return struct.unpack('<I', struct.pack('<f', x))[0]


SCALE_C = (128 ** -0.5) * math.log2(math.e)
PROF = False
MAP = 0
NOCOMP = 0
NOMEM = 0
NOX = 0
STAG = 0
PRIO = 0
K2X = 0
P1PROF = 0
TWICE = 0
WARM = 1
ROT = 1
KVNT = 1
SKIP1 = 0
SKIP2 = 0
PROF_BASE = 0x8000000
P_SRD = S(64, 4)


def stamp(p, k):
    if PROF:
        p.raw(f's_memtime s[{70 + 2 * k}:{71 + 2 * k}]', 'smem')


_cst = [0]


def cstamp(p, k, it=8):
    if not PROF:
        return
    if P1PROF and it >= 8:
        return
    _cst[0] += 1
    lab = f'cst{_cst[0]}'
    p.scmp('s_cmp_eq_u32', sCNT, it)
    p.branch('s_cbranch_scc0', lab)
    stamp(p, k)
    p.label(lab)


def stamp_flush(p, n, k2=False):
    if not PROF:
        return
    p.waitcnt(lgkm=0)
    p.salu('s_lshl_b32', S(68), S(2), 3 if k2 else 2)
    p.salu('s_add_u32', S(68), S(68), S(66) if k2 else sW)
    p.salu('s_lshl_b32', S(68), S(68), 6)
    p.salu('s_add_u32', S(68), S(68), PROF_BASE + (0x100000 if k2 else 0))
    build_srd(p, P_SRD, S(40), S(41), S(68), 64)
    p.valu('v_mov_b32', T[1], 0)
    for k in range(n):
        p.valu('v_mov_b32', T[2], S(70 + 2 * k))
        p.bstore(T[2], T[1], P_SRD, 0, off=4 * k)
    p.raw('s_getreg_b32 s69, hwreg(HW_REG_HW_ID)', 'salu', {('s', 69)})
    p.valu('v_mov_b32', T[2], S(69))
    p.bstore(T[2], T[1], P_SRD, 0, off=60)

ACC0 = 128
QF0 = 64
S0 = 32
AB0 = 20
NEGM0 = 16
L0 = 12
vKRD, vVRD, vKD, vVD = V(1), V(2), V(3), V(4)
vWD, vX = V(5), V(6)
vXRD = V(16)
T = [V(7), V(8), V(9), V(10), V(11)]


def acc(j, t):
    return V(ACC0 + (j * 4 + t) * 4, 4)


def qf(t, s):
    return V(QF0 + (t * 4 + s) * 4, 4)


def sreg(t, tp):
    return V(S0 + t * 8 + tp * 4, 4)


def preg(t):
    return V(S0 + t * 8, 4)


def abuf(k):
    return V(AB0 + 4 * (k % 3), 4)


def xbuf(n, tau, t):
    return V(32 + (n % 3) * 32 + (tau * 4 + t) * 4, 4)


X_SRD, W_SRD, K_SRD, V_SRD, O_SRD = S(4, 4), S(8, 4), S(12, 4), S(16, 4), S(20, 4)
sW, sWB = S(24), S(25)
sC, sTHR, sCNT, sM0B, sKOFF, sFLAG = S(42), S(43), S(44), S(45), S(46), S(47)
sXT = [0, S(48), S(49), S(50)]
sDELTA, sTMP, sRING, sNC = S(51), S(52), S(53), S(54)


def build_srd(p, srd, base_lo, base_hi, off_lo, nrec):
    n = srd[1]
    p.salu('s_add_u32', S(n), base_lo, off_lo)
    p.salu('s_addc_u32', S(n + 1), base_hi, 0)
    p.salu('s_and_b32', S(n + 1), S(n + 1), 0xffff)
    p.salu('s_mov_b32', S(n + 2), nrec)
    p.salu('s_mov_b32', S(n + 3), 0x20000)


def gemm_step(p, nt, slot_off, xb, first, rd_addr):
    if NOCOMP:
        return
    frags = [(tau, j) for tau in range(2) for j in range(8)]

    def issue(k):
        tau, j = frags[k]
        b = abuf(k)
        off = slot_off + tau * L.TILE + 32 * j
        p.ds_read('ds_read_b64_tr_b16', V(b[1], 2), rd_addr, off)
        p.ds_read('ds_read_b64_tr_b16', V(b[1] + 2, 2), rd_addr, off + L.W_RD2)
    for k in range(3):
        issue(k)
    for k, (tau, j) in enumerate(frags):
        rem = min(len(frags) - 1 - k, 2)
        p.waitcnt(lgkm=2 * rem)
        for t in range(nt):
            c = 0 if (first and tau == 0) else acc(j, t)
            p.mfma(acc(j, t), abuf(k), xb(tau, t), c)
        if k + 3 < len(frags):
            issue(k + 3)


def pack_pair(p, dst, a, b, scale=None):
    d = dst[1]
    if scale is not None:
        for k in range(4):
            p.valu('v_mul_f32', V(a[1] + k), V(a[1] + k), scale)
            p.valu('v_mul_f32', V(b[1] + k), V(b[1] + k), scale)
    p.valu('v_cvt_pk_bf16_f32', V(d), V(a[1]), V(a[1] + 1))
    p.valu('v_cvt_pk_bf16_f32', V(d + 1), V(a[1] + 2), V(a[1] + 3))
    p.valu('v_cvt_pk_bf16_f32', V(d + 2), V(b[1]), V(b[1] + 1))
    p.valu('v_cvt_pk_bf16_f32', V(d + 3), V(b[1] + 2), V(b[1] + 3))
    p.valu('v_permlane16_swap_b32', V(d), V(d + 2))
    p.valu('v_permlane16_swap_b32', V(d + 1), V(d + 3))


def xlane_reduce(p, op, x, t1):
    p.valu('v_mov_b32', t1, x)
    p.valu('v_permlane32_swap_b32', x, t1)
    p.valu(op, x, x, t1)
    p.valu('v_mov_b32', t1, x)
    p.valu('v_permlane16_swap_b32', x, t1)
    p.valu(op, x, x, t1)


def kvf():
    return {0: '', 1: 'nt', 2: 'sc1 nt', 3: 'sc0 sc1 nt', 4: 'sc1', 5: 'sc0 sc1'}[KVNT]


def dma_kv_static(p, chunk, step):
    so = (step % RING) * STEP
    p.salu('s_mov_b32', sTMP, chunk * 8192)
    p.salu('s_add_u32', 'm0', sWB, so)
    p.dma(vKD, K_SRD, sTMP, tag=('D', step), flags=kvf())
    p.salu('s_add_u32', 'm0', sWB, so + L.BLK2_K - 256)
    p.dma(vKD, K_SRD, sTMP, off=256, tag=('D', step), flags=kvf())
    p.salu('s_add_u32', 'm0', sWB, so + L.TILE)
    p.dma(vVD, V_SRD, sTMP, tag=('D', step), flags=kvf())
    p.salu('s_add_u32', 'm0', sWB, so + L.TILE + L.BLK2_T - 256)
    p.dma(vVD, V_SRD, sTMP, off=256, tag=('D', step), flags=kvf())


def dma_w_static(p, step, pitch, srd, voff, rot=None):
    so = (step % RING) * STEP
    if rot is not None:
        p.salu('s_add_u32', S(63), rot, step)
        p.salu('s_and_b32', S(63), S(63), 7)
        p.salu('s_mul_i32', S(63), S(63), 64 * pitch)
    for tau in range(2):
        for e in range(2):
            p.salu('s_add_u32', 'm0', sWB, so + tau * L.TILE + e * L.BLK2_T)
            if rot is None:
                p.salu('s_mov_b32', sTMP, (64 * step + 32 * tau + e) * pitch)
            else:
                p.salu('s_add_u32', sTMP, S(63), (32 * tau + e) * pitch)
            p.dma(voff, srd, sTMP, tag=('D', step))


def k1_body(p, nt, sfx):
    p.vm_queue = []
    p.nomem = NOMEM
    p.nox = NOX

    NS = 16
    WT = [STEP, STEP + L.TILE, 3 * STEP, 3 * STEP + L.TILE]
    XS = [RING * STEP, 2 * STEP]
    XBASE = 2 * STEP

    def xreg(n, t):
        return V(32 + (n % 2) * 16 + t * 4, 4)

    sKS = S(63)
    sKW, sKX = S(64), S(65)

    def adv_k():
        p.salu('s_add_u32', sKS, sKS, 1)
        p.salu('s_and_b32', sKS, sKS, 15)
        p.salu('s_lshl_b32', sKW, sKS, 18)
        p.salu('s_lshl_b32', sKX, sKS, 6)

    def xdma1(step, t):
        p.salu('s_add_u32', 'm0', S(60), XS[step % 2] + t * 1024)
        if t == 0:
            p.dma(vX, X_SRD, sKX, tag=('X', step))
        else:
            p.salu('s_add_u32', sTMP, sKX, 16384 * t)
            p.dma(vX, X_SRD, sTMP, tag=('X', step))

    def wdma1(step, e):
        p.salu('s_add_u32', 'm0', sWB, WT[step % 4] + e * L.BLK2_T)
        if e == 0:
            p.dma(vWD, W_SRD, sKW, tag=('W', step))
        else:
            p.salu('s_add_u32', sTMP, sKW, 8192)
            p.dma(vWD, W_SRD, sTMP, tag=('W', step))

    def xread(step):
        for t in range(nt):
            p.ds_read('ds_read_b128', xreg(step, t), vXRD, XS[step % 2] - XBASE + t * 1024)

    def kvdma1(chunk, q):
        so = (chunk % RING) * STEP
        if q == 0:
            p.salu('s_mov_b32', S(66), chunk * 8192)
        base, voff, srd, off = [(so, vKD, K_SRD, 0), (so + L.BLK2_K - 256, vKD, K_SRD, 256),
                                (so + L.TILE, vVD, V_SRD, 0), (so + L.TILE + L.BLK2_T - 256, vVD, V_SRD, 256)][q]
        p.salu('s_add_u32', 'm0', sWB, base)
        p.dma(voff, srd, S(66), off=off, tag=('D', chunk), flags=kvf())

    def p1_step(s, looped):
        pp = P1PROF and looped and s == 1
        if pp:
            cstamp(p, 6, 1)
        if P1PROF and looped and s == 2:
            cstamp(p, 13, 1)
        if looped:
            p.waitcnt(vm=2 + nt)
        else:
            p.vm_wait_for({('W', s), ('X', s + 1)})
        if pp:
            cstamp(p, 7, 1)
        p.barrier()
        if pp:
            cstamp(p, 8, 1)

        def issue(k):
            b = abuf(k)
            off = WT[s % 4] + 32 * k
            p.ds_read('ds_read_b64_tr_b16', V(b[1], 2), vKRD, off)
            p.ds_read('ds_read_b64_tr_b16', V(b[1] + 2, 2), vKRD, off + L.W_RD2)
        for k in range(3):
            issue(k)
        nx = 0
        if s + 1 < NS:
            xread(s + 1)
            nx = nt
        extra = {j: [] for j in range(8)}
        if s + 3 < NS:
            extra[0].append(adv_k)
            extra[1].append(lambda: wdma1(s + 3, 0))
            extra[2].append(lambda: wdma1(s + 3, 1))
            for t in range(nt):
                extra[3 + t].append(lambda t=t: xdma1(s + 3, t))
        if s in (14, 15):
            for q in range(4):
                extra[1 + q].append(lambda q=q: kvdma1(s - 13, q))
        for j in range(8):
            younger = 2 * min(7 - j, 2) + (nx if j < 3 else 0)
            p.waitcnt(lgkm=younger)
            if pp and j in (0, 1, 3, 7):
                cstamp(p, {0: 9, 1: 10, 3: 11, 7: 12}[j], 1)
            for t in range(nt):
                p.mfma(acc(j, t), abuf(j), xreg(s, t), acc(j, t))
            if j + 3 < 8:
                issue(j + 3)
            for f in extra[j]:
                f()

    stamp(p, 1)
    for q in range(4):
        kvdma1(0, q)
    if STAG:
        p.scmp('s_cmp_lt_u32', S(2), 256)
        p.branch('s_cbranch_scc1', f'nostag{sfx}')
        for _ in range(STAG):
            p.raw('s_sleep 16')
        p.label(f'nostag{sfx}')
    if PRIO:
        p.scmp('s_cmp_ge_u32', S(2), 256)
        p.branch('s_cbranch_scc1', f'noprio{sfx}')
        p.raw('s_setprio 3')
        p.label(f'noprio{sfx}')
    p.salu('s_and_b32', sKS, S(59), 15)
    p.salu('s_lshl_b32', sKW, sKS, 18)
    p.salu('s_lshl_b32', sKX, sKS, 6)
    for st in range(3):
        if st:
            adv_k()
        wdma1(st, 0)
        wdma1(st, 1)
        if st == 2:
            p.vm_wait_for({('X', 0)})
            xread(0)
            p.waitcnt(lgkm=0)
        for t in range(nt):
            xdma1(st, t)
        if st == 0:
            for j in range(8):
                for t in range(nt):
                    for r in range(4):
                        p.valu('v_mov_b32', V(acc(j, t)[1] + r), 0)
    stamp(p, 2)
    p.salu('s_mov_b32', sCNT, 0)
    p.label(f'p1_loop{sfx}')
    for s4 in range(4):
        p1_step(s4, True)
    p.salu('s_add_u32', sCNT, sCNT, 1)
    p.scmp('s_cmp_lt_u32', sCNT, 3)
    p.branch('s_cbranch_scc1', f'p1_loop{sfx}')
    p.vm_queue = [('W', 13)] * 2 + [('X', 13)] * nt + [('W', 14)] * 2 + [('X', 14)] * nt
    p.vm_queue = [('W', 12)] * 2 + [('X', 12)] * nt + p.vm_queue
    for s in range(12, 16):
        p1_step(s, False)
    stamp(p, 3)
    if PRIO:
        p.raw('s_setprio 0')
    for t in range(nt):
        for s in range(4):
            pack_pair(p, qf(t, s), acc(2 * s, t), acc(2 * s + 1, t))
    ec = ECompiler(p, {'l': V(0)}, T[:])
    ec.emit(L.K_RD, vKRD)
    for t in range(nt):
        p.valu('v_mov_b32', V(NEGM0 + t), 0x7f800000)
        p.valu('v_mov_b32', V(L0 + t), 0)
    p.salu('s_mov_b32', sCNT, 0)
    p.salu('s_mov_b32', S(62), STEP)
    p.salu('s_mov_b32', sFLAG, 1)
    p.salu('s_mov_b32', sKOFF, 3 * 8192)
    p.salu('s_mov_b32', sRING, 3 * STEP)
    assert len(p.vm_queue) == 8, p.vm_queue
    if SKIP2:
        p.branch('s_branch', f'epi{sfx}')

    p.label(f'chunk_top{sfx}')
    cstamp(p, 6)
    cstamp(p, 13, 9)
    p.waitcnt(vm=8)
    cstamp(p, 7)
    p.barrier()
    cstamp(p, 8)
    cstamp(p, 9)
    p.label(f'qk_start{sfx}')
    if NOCOMP:
        p.branch('s_branch', f'skipc{sfx}')
    kfr = [(tp, s) for tp in range(2) for s in range(4)]

    def kissue(k):
        tp, s = kfr[k]
        p.ds_read('ds_read_b128', abuf(k), vKRD, tp * L.K_T + s * L.K_S)
    for k in range(3):
        kissue(k)
    for k, (tp, s) in enumerate(kfr):
        p.waitcnt(lgkm=min(7 - k, 2))
        for t in range(nt):
            p.mfma(sreg(t, tp), abuf(k), qf(t, s), 0 if s == 0 else sreg(t, tp))
        if k + 3 < 8:
            kissue(k + 3)
    cstamp(p, 10)
    p.scmp('s_cmp_eq_u32', sFLAG, 1)
    p.branch('s_cbranch_scc1', f'rescale{sfx}')
    p.label(f'softmax{sfx}')
    p.nop(7)
    for tp in range(2):
        for t in range(nt):
            for r in range(4):
                x = V(sreg(t, tp)[1] + r)
                p.valu('v_fma_f32', x, x, sC, V(NEGM0 + t))
            for r in range(4):
                x = V(sreg(t, tp)[1] + r)
                p.valu('v_exp_f32', x, x)
    for t in range(nt):
        b = S0 + t * 8
        p.valu('v_add_f32', T[t], V(b), V(b + 1))
        p.valu('v_add_f32', T[4], V(b + 2), V(b + 3))
        p.valu('v_add_f32', T[t], T[t], V(b + 4))
        p.valu('v_add_f32', T[4], T[4], V(b + 5))
        p.valu('v_add_f32', T[t], T[t], V(b + 6))
        p.valu('v_add_f32', T[4], T[4], V(b + 7))
        p.valu('v_add_f32', T[t], T[t], T[4])
    p.valu('v_max3_f32', T[4], T[0], T[1], T[2])
    if nt == 4:
        p.valu('v_max_f32', T[4], T[4], T[3])
    p.valu('v_cmp_nge_f32', 'vcc', sTHR, T[4])
    p.branch('s_cbranch_vccnz', f'redo{sfx}')
    p.label(f'cont{sfx}')
    p.salu('s_mov_b32', sFLAG, 0)
    cstamp(p, 11)

    def vissue(k):
        b = abuf(k)
        p.ds_read('ds_read_b64_tr_b16', V(b[1], 2), vVRD, L.TILE + 32 * k)
        p.ds_read('ds_read_b64_tr_b16', V(b[1] + 2, 2), vVRD, L.TILE + 32 * k + L.V_RD2)
    for k in range(3):
        vissue(k)
    for t in range(nt):
        p.valu('v_add_f32', V(L0 + t), V(L0 + t), T[t])
        b = S0 + t * 8
        for k in range(4):
            p.valu('v_cvt_pk_bf16_f32', V(b + k), V(b + 2 * k), V(b + 2 * k + 1))
    cstamp(p, 12)
    for j in range(8):
        p.waitcnt(lgkm=2 * min(7 - j, 2))
        for t in range(nt):
            p.mfma(acc(j, t), abuf(j), preg(t), acc(j, t))
        if j + 3 < 8:
            vissue(j + 3)
        if j == 0:
            p.salu('s_add_u32', sM0B, sRING, sWB)
            p.salu('s_mov_b32', 'm0', sM0B)
            p.salu('s_add_u32', sRING, sRING, STEP)
            p.dma(vKD, K_SRD, sKOFF, flags=kvf())
        if j == 1:
            p.salu('s_add_u32', 'm0', sM0B, L.BLK2_K - 256)
            p.scmp('s_cmp_eq_u32', sRING, RING * STEP)
            p.salu('s_cselect_b32', sRING, 0, sRING)
            p.dma(vKD, K_SRD, sKOFF, off=256, flags=kvf())
        if j == 2:
            p.salu('s_add_u32', 'm0', sM0B, L.TILE)
            p.salu('s_and_b32', sTMP, sCNT, 3)
            p.dma(vVD, V_SRD, sKOFF, flags=kvf())
        if j == 3:
            p.salu('s_add_u32', 'm0', sM0B, L.TILE + L.BLK2_T - 256)
            p.scmp('s_cmp_eq_u32', sTMP, 3)
            p.salu('s_cselect_b32', sDELTA, -3 * STEP, S(62))
            p.dma(vVD, V_SRD, sKOFF, off=256, flags=kvf())
            p.salu('s_add_u32', sKOFF, sKOFF, 8192)
    p.label(f'skipc{sfx}')
    p.valu('v_add_u32', vKRD, sDELTA, vKRD)
    p.valu('v_add_u32', vVRD, sDELTA, vVRD)
    p.salu('s_add_u32', sCNT, sCNT, 1)
    p.scmp('s_cmp_lt_u32', sCNT, 16)
    p.branch('s_cbranch_scc1', f'chunk_top{sfx}')

    p.label(f'epi{sfx}')
    stamp(p, 4)
    p.valu('v_and_b32', T[0], 63, V(0))
    p.valu('v_lshlrev_b32', T[0], 4, T[0])
    p.valu('v_add_u32', T[0], S(26), T[0])
    for t in range(nt):
        xlane_reduce(p, 'v_add_f32', V(L0 + t), T[1])
        p.valu('v_rcp_f32', V(L0 + t), V(L0 + t))
    for t in range(nt):
        p.salu('s_mov_b32', sTMP, t * 4096)
        for s in range(4):
            d = qf(t, s)
            pack_pair(p, d, acc(2 * s, t), acc(2 * s + 1, t), scale=V(L0 + t))
            p.bstore(d, T[0], O_SRD, sTMP, off=s * 1024, flags='nt' if K2X & 128 else '')
    if PROF:
        p.waitcnt(vm=0)
    stamp(p, 5)
    if PROF:
        p.raw('s_memrealtime s[98:99]', 'smem')
        p.waitcnt(lgkm=0)
        p.salu('s_sub_u32', S(98), S(98), S(100))
    stamp_flush(p, 15)
    p.raw('s_endpgm')

    p.label(f'redo{sfx}')
    p.scmp('s_cmp_eq_u32', sFLAG, 2)
    p.branch('s_cbranch_scc1', f'cont{sfx}')
    p.salu('s_mov_b32', sFLAG, 1)
    p.branch('s_branch', f'qk_start{sfx}')

    p.label(f'rescale{sfx}')
    p.nop(7)
    for t in range(nt):
        b = S0 + t * 8
        p.valu('v_max3_f32', T[0], V(b), V(b + 1), V(b + 2))
        p.valu('v_max3_f32', T[1], V(b + 3), V(b + 4), V(b + 5))
        p.valu('v_max3_f32', T[0], T[0], V(b + 6), V(b + 7))
        p.valu('v_max_f32', T[0], T[0], T[1])
        xlane_reduce(p, 'v_max_f32', T[0], T[1])
        p.valu('v_mul_f32', T[0], sNC, T[0])
        p.valu('v_min_f32', T[0], V(NEGM0 + t), T[0])
        p.valu('v_sub_f32', T[1], T[0], V(NEGM0 + t))
        p.valu('v_exp_f32', T[1], T[1])
        p.valu('v_mov_b32', V(NEGM0 + t), T[0])
        p.valu('v_mul_f32', V(L0 + t), V(L0 + t), T[1])
        for j in range(8):
            for r in range(4):
                a = V(acc(j, t)[1] + r)
                p.valu('v_mul_f32', a, a, T[1])
    p.salu('s_mov_b32', sFLAG, 2)
    p.branch('s_branch', f'softmax{sfx}')


def wave_setup(p):
    p.valu('v_lshrrev_b32', T[0], 6, V(0))
    p.valu('v_readfirstlane_b32', sW, T[0])
    p.valu('v_and_b32', V(0), 63, V(0))
    p.salu('s_mul_i32', sWB, sW, L.WBASE)
    p.salu('s_mul_i32', S(27), sW, 3)
    p.salu('s_add_u32', S(27), S(27), 1)
    p.scmp('s_cmp_eq_u32', sW, 0)
    p.salu('s_cselect_b32', S(27), 0, S(27))
    p.salu('s_lshl_b32', S(26), S(27), 12)


def gen_k1():
    p = Prog()
    p.scmp('s_cmp_ge_u32', S(2), 512)
    p.branch('s_cbranch_scc1', 'k1_end')
    stamp(p, 0)
    if PROF:
        p.raw('s_memrealtime s[100:101]', 'smem')
    p.salu('s_and_b32', S(28), S(2), 7)
    p.salu('s_lshr_b32', S(29), S(2), 3)
    p.salu('s_lshr_b32', S(55), S(28), 2)
    if MAP == 0:
        p.salu('s_and_b32', S(56), S(28), 3)
        p.salu('s_lshl_b32', S(56), S(56), 3)
        p.salu('s_and_b32', S(57), S(29), 7)
        p.salu('s_add_u32', S(56), S(56), S(57))
        p.salu('s_lshr_b32', S(57), S(29), 3)
    else:
        p.salu('s_and_b32', S(56), S(29), 31)
        p.salu('s_and_b32', S(57), S(28), 3)
        p.salu('s_lshl_b32', S(57), S(57), 1)
        p.salu('s_lshr_b32', S(58), S(29), 5)
        p.salu('s_add_u32', S(57), S(57), S(58))
    p.salu('s_mul_i32', S(58), S(55), 40)
    p.salu('s_add_u32', S(30), S(0), S(58))
    p.salu('s_addc_u32', S(31), S(1), 0)
    p.sload('s_load_dwordx8', S(32, 8), S(30, 2), 0)
    p.sload('s_load_dwordx2', S(40, 2), S(0, 2), 96)
    wave_setup(p)
    p.salu('s_mov_b32', sC, f32bits(SCALE_C))
    p.salu('s_mov_b32', sNC, f32bits(-SCALE_C))
    p.salu('s_mov_b32', sTHR, f32bits(4096.0))
    p.salu('s_mov_b32', sXT[1], 16384)
    p.salu('s_mov_b32', sXT[2], 32768)
    p.salu('s_mov_b32', sXT[3], 49152)
    ec = ECompiler(p, {'l': V(0), 'w': sW, 't0': S(27)}, T[:])
    l = var('l')
    ec.emit(L.W_RD, vKRD)
    ec.emit(L.V_RD, vVRD)
    ec.emit(L.K_ROW * 256 + (l & 15) * 16, vKD)
    ec.emit(L.V_ROW * 256 + (l & 15) * 16, vVD)
    ec.emit(L.W_ROW * 8192 + (l & 15) * 16, vWD)
    xr = l >> 2
    ec.emit(((var('t0') << 4) + xr) * 1024 + (((l & 3) ^ ((4 - (xr >> 2)) & 3)) << 4), vX)
    xi = l & 15
    ec.emit((var('t0') << 10) + xi * 64 + (((l >> 4) ^ ((4 - (xi >> 2)) & 3)) << 4) + 2 * STEP, vXRD)
    p.waitcnt(lgkm=0)
    p.salu('s_mul_i32', S(58), S(57), 212992)
    build_srd(p, X_SRD, S(32), S(33), S(58), 212992)
    p.salu('s_lshl_b32', S(58), S(57), 5)
    p.salu('s_add_u32', S(58), S(58), S(56))
    p.salu('s_lshl_b32', S(59), S(58), 17)
    build_srd(p, K_SRD, S(34), S(35), S(59), 131072)
    build_srd(p, V_SRD, S(36), S(37), S(59), 131072)
    p.salu('s_lshl_b32', S(59), S(56), 8)
    p.salu('s_sub_u32', S(60), 512 * 8192, S(59))
    build_srd(p, W_SRD, S(38), S(39), S(59), S(60))
    p.salu('s_lshl_b32', S(59), S(55), 8)
    p.salu('s_add_u32', S(58), S(58), S(59))
    p.salu('s_mul_i32', S(58), S(58), O_UNIT)
    build_srd(p, O_SRD, S(40), S(41), S(58), O_UNIT)
    ec.emit((l >> 4) * 8192 + (l & 15) * 16, T[0] if False else V(12))
    ec.emit(l * 16, V(13))
    p.salu('s_lshl_b32', S(61), S(57), 2)
    p.salu('s_add_u32', S(61), S(61), sW)
    p.salu('s_lshl_b32', S(61), S(61), 17)
    p.salu('s_and_b32', S(62), S(56), 7)
    p.salu('s_mul_i32', S(62), S(62), 26)
    p.salu('s_add_u32', S(62), S(62), sW)
    p.salu('s_lshl_b32', S(62), S(62), 10)
    p.salu('s_lshl_b32', S(59), S(56), 1)
    p.salu('s_lshl_b32', S(60), S(27), 10)
    p.scmp('s_cmp_eq_u32', sW, 0)
    p.branch('s_cbranch_scc0', 'k1_nt3')
    k1_body(p, 4, '_4')
    p.label('k1_nt3')
    k1_body(p, 3, '_3')
    p.label('k1_end')
    p.raw('s_endpgm')
    p.pad_hazards()
    return p


K2_RED = 13 * 8192
LDS_K2 = K2_RED


def k2_body(p, nt, sfx):
    sKB, sKWo, sKAP = S(63), S(64), S(65)

    def breg(n, t):
        return V(64 + (n % 4) * 16 + t * 4, 4)

    def adv_k():
        p.salu('s_add_u32', sKAP, sKAP, 2)
        p.salu('s_lshr_b32', sKB, sKAP, 2)
        p.salu('s_mul_i32', sKB, sKB, O_UNIT)
        p.salu('s_and_b32', sTMP, sKAP, 3)
        p.salu('s_lshl_b32', sTMP, sTMP, 10)
        p.salu('s_add_u32', sKB, sKB, sTMP)
        p.salu('s_lshl_b32', sKWo, sKAP, 15)

    def bload1(step, t):
        fl = 'nt' if K2X & 32 else ''
        if t == 0:
            p.bload(breg(step, t), vX, X_SRD, sKB, flags=fl)
        else:
            p.salu('s_add_u32', sTMP, sKB, 4096 * t)
            p.bload(breg(step, t), vX, X_SRD, sTMP, flags=fl)

    def wdma1(step, e):
        p.salu('s_add_u32', 'm0', sWB, (step % 4) * L.TILE + e * L.BLK2_T - e * 1024)
        p.dma(vWD, W_SRD, sKWo, off=e * 1024, flags='nt' if K2X & 64 else '')

    p.salu('s_sub_u32', sKAP, S(61 + 6), 2)
    for st in range(3):
        adv_k()
        wdma1(st, 0)
        wdma1(st, 1)
        for t in range(nt):
            bload1(st, t)
        if st == 0:
            for j in range(8):
                for t in range(nt):
                    for r in range(4):
                        p.valu('v_mov_b32', V(acc(j, t)[1] + r), 0)
    p.salu('s_mov_b32', sCNT, 0)
    stamp(p, 1)

    def a4(k):
        return V(32 + 4 * (k % 4), 4)

    def issue(st, k):
        b = a4(k)
        off = (st % 4) * L.TILE + 32 * (k % 8)
        p.ds_read('ds_read_b64_tr_b16', V(b[1], 2), vKRD, off)
        p.ds_read('ds_read_b64_tr_b16', V(b[1] + 2, 2), vKRD, off + L.W_RD2)
    p.waitcnt(vm=nt + 2 * (2 + nt))
    p.barrier()
    for k in range(3):
        issue(0, k)
    p.label(f'k2_loop{sfx}')
    for s in range(4):
        p.waitcnt(vm=2 + 2 * nt)
        p.barrier()
        if s == 0:
            cstamp(p, 2, 0)
        extra = {j: [] for j in range(8)}
        extra[0].append(adv_k)
        extra[1].append(lambda: wdma1(s + 3, 0))
        extra[2].append(lambda: wdma1(s + 3, 1))
        for t in range(nt):
            extra[3 + t].append(lambda t=t: bload1(s + 3, t))
        for j in range(8):
            p.waitcnt(lgkm=4)
            for t in range(nt):
                p.mfma(acc(j, t), a4(j), breg(s, t), acc(j, t))
            issue(s if j + 3 < 8 else s + 1, j + 3)
            for f in extra[j]:
                f()
    p.salu('s_add_u32', sCNT, sCNT, 1)
    p.scmp('s_cmp_lt_u32', sCNT, 4)
    p.branch('s_cbranch_scc1', f'k2_loop{sfx}')
    stamp(p, 3)
    p.waitcnt(vm=0, lgkm=0)
    p.barrier()
    p.valu('v_lshlrev_b32', T[0], 4, V(0))
    p.salu('s_lshl_b32', S(26), S(27), 13)
    p.valu('v_add_u32', T[0], S(26), T[0])
    p.scmp('s_cmp_eq_u32', S(67), 0)
    p.branch('s_cbranch_scc1', f'k2_g0{sfx}')
    for t in range(nt):
        for j in range(8):
            p.ds_write('ds_write_b128', T[0], acc(j, t), t * 8192 + j * 1024)
    p.waitcnt(lgkm=0)
    p.barrier()
    stamp(p, 4)
    stamp(p, 5)
    stamp_flush(p, 6, True)
    p.raw('s_endpgm')
    p.label(f'k2_g0{sfx}')
    p.barrier()
    stamp(p, 4)
    for t in range(nt):
        for j in range(8):
            p.ds_read('ds_read_b128', V(64 + (j + 8 * (t % 2)) * 4, 4), T[0], t * 8192 + j * 1024)
        p.waitcnt(lgkm=0)
        for j in range(8):
            for r in range(4):
                a = V(acc(j, t)[1] + r)
                p.valu('v_add_f32', a, a, V(64 + (j + 8 * (t % 2)) * 4 + r))
        for jh in range(2):
            p.salu('s_mov_b32', sTMP, t * 8192 + jh * 4096)
            for jj in range(4):
                p.bstore(acc(jh * 4 + jj, t), T[0], O_SRD, sTMP, off=jj * 1024, flags='nt' if K2X & 256 else '')
    if PROF:
        p.waitcnt(vm=0)
    stamp(p, 5)
    stamp_flush(p, 6, True)
    p.raw('s_endpgm')


def gen_k2():
    p = Prog()
    p.scmp('s_cmp_ge_u32', S(2), 256)
    p.branch('s_cbranch_scc1', 'k2_end')
    stamp(p, 0)
    p.salu('s_and_b32', S(28), S(2), 7)
    p.salu('s_lshr_b32', S(29), S(2), 3)
    p.salu('s_lshr_b32', S(55), S(28), 2)
    p.salu('s_and_b32', S(56), S(28), 3)
    p.salu('s_lshr_b32', S(57), S(29), 2)
    p.salu('s_and_b32', S(61), S(29), 3)
    if K2X & 8:
        p.salu('s_mov_b32', S(57), 0)
    if K2X & 16:
        p.salu('s_mov_b32', S(61), 0)
    p.salu('s_mul_i32', S(58), S(55), 40)
    p.salu('s_add_u32', S(30), S(0), S(58))
    p.salu('s_addc_u32', S(31), S(1), 0)
    p.sload('s_load_dwordx2', S(32, 2), S(30, 2), 32)
    p.sload('s_load_dwordx2', S(40, 2), S(0, 2), 96)
    p.valu('v_lshrrev_b32', T[0], 6, V(0))
    p.valu('v_readfirstlane_b32', S(66), T[0])
    p.valu('v_and_b32', V(0), 63, V(0))
    p.salu('s_lshr_b32', S(67), S(66), 2)
    p.salu('s_and_b32', sW, S(66), 3)
    p.salu('s_mul_i32', sWB, sW, L.WBASE)
    p.salu('s_mul_i32', S(68), S(67), 4 * L.TILE)
    p.salu('s_add_u32', sWB, sWB, S(68))
    p.salu('s_mul_i32', S(27), sW, 3)
    p.scmp('s_cmp_gt_u32', sW, S(67))
    p.salu('s_addc_u32', S(27), S(27), 0)
    ec = ECompiler(p, {'l': V(0), 'w': sW, 't0': S(27), 'gb': S(68)}, T[:])
    l = var('l')
    ec.emit(L.W_RD + var('gb'), vKRD)
    ec.emit(L.WO_ROW * 1024 + (l & 15) * 16, vWD)
    ec.emit((var('t0') << 12) + l * 16, vX)
    p.waitcnt(lgkm=0)
    p.salu('s_lshl_b32', S(58), S(55), 3)
    p.salu('s_add_u32', S(58), S(58), S(57))
    p.salu('s_lshl_b32', S(59), S(58), 5)
    p.salu('s_lshl_b32', S(60), S(56), 3)
    p.salu('s_add_u32', S(59), S(59), S(60))
    p.salu('s_mul_i32', S(59), S(59), O_UNIT)
    build_srd(p, X_SRD, S(40), S(41), S(59), 8 * O_UNIT)
    p.salu('s_lshl_b32', S(59), S(56), 20)
    p.salu('s_lshl_b32', S(60), S(61), 8)
    p.salu('s_add_u32', S(59), S(59), S(60))
    p.salu('s_sub_u32', S(60), 1 << 20, S(60))
    build_srd(p, W_SRD, S(32), S(33), S(59), S(60))
    p.salu('s_lshl_b32', S(59), S(56), 4)
    p.salu('s_add_u32', S(59), S(59), S(58))
    p.salu('s_lshl_b32', S(59), S(59), 2)
    p.salu('s_add_u32', S(59), S(59), S(61))
    p.salu('s_mul_i32', S(59), S(59), PART_UNIT)
    p.salu('s_add_u32', S(59), S(59), PART_BASE)
    build_srd(p, O_SRD, S(40), S(41), S(59), PART_UNIT)
    p.scmp('s_cmp_eq_u32', sW, S(67))
    p.branch('s_cbranch_scc0', 'k2_nt3')
    k2_body(p, 4, '_4')
    p.label('k2_nt3')
    k2_body(p, 3, '_3')
    p.label('k2_end')
    p.raw('s_endpgm')
    p.pad_hazards()
    return p


def gen_k3():
    p = Prog()
    p.scmp('s_cmp_ge_u32', S(2), 832)
    p.branch('s_cbranch_scc1', 'k3_end')
    p.sload('s_load_dwordx2', S(40, 2), S(0, 2), 96)
    p.sload('s_load_dwordx2', S(32, 2), S(0, 2), 80)
    p.salu('s_mul_hi_u32', S(28), S(2), 0x4EC4EC4F)
    p.salu('s_lshr_b32', S(28), S(28), 2)
    p.salu('s_mul_i32', S(29), S(28), 13)
    p.salu('s_sub_u32', S(29), S(2), S(29))
    p.valu('v_lshrrev_b32', T[0], 6, V(0))
    p.valu('v_readfirstlane_b32', sW, T[0])
    p.valu('v_and_b32', V(0), 63, V(0))
    p.salu('s_mul_i32', S(30), S(28), PART_UNIT)
    p.salu('s_lshl_b32', S(31), S(29), 13)
    p.salu('s_add_u32', S(30), S(30), S(31))
    p.salu('s_lshl_b32', S(31), sW, 11)
    p.salu('s_add_u32', S(30), S(30), S(31))
    p.valu('v_lshlrev_b32', V(1), 4, V(0))
    p.valu('v_add_u32', V(1), S(30), V(1))
    p.waitcnt(lgkm=0)
    build_srd(p, X_SRD, S(40), S(41), PART_BASE, 256 * PART_UNIT)
    build_srd(p, O_SRD, S(32), S(33), 0, 8 * 208 * 1024 * 2)
    for kq in range(4):
        p.salu('s_mov_b32', sTMP, kq * 64 * PART_UNIT)
        p.bload(V(32 + kq * 8, 4), V(1), X_SRD, sTMP, flags='nt' if K2X & 512 else '')
        p.bload(V(36 + kq * 8, 4), V(1), X_SRD, sTMP, off=1024, flags='nt' if K2X & 512 else '')
    p.salu('s_lshr_b32', S(55), S(28), 5)
    p.salu('s_lshr_b32', S(57), S(28), 2)
    p.salu('s_and_b32', S(57), S(57), 7)
    p.salu('s_and_b32', S(61), S(28), 3)
    p.salu('s_mul_i32', S(58), S(57), 208)
    p.salu('s_lshl_b32', S(59), S(29), 4)
    p.salu('s_add_u32', S(58), S(58), S(59))
    p.salu('s_lshl_b32', S(58), S(58), 11)
    p.salu('s_lshl_b32', S(59), S(55), 10)
    p.salu('s_add_u32', S(58), S(58), S(59))
    p.salu('s_lshl_b32', S(59), S(61), 8)
    p.salu('s_add_u32', S(58), S(58), S(59))
    p.salu('s_lshl_b32', S(59), sW, 6)
    p.salu('s_add_u32', S(58), S(58), S(59))
    ec = ECompiler(p, {'l': V(0), 'base': S(58)}, T[:])
    l = var('l')
    ec.emit(var('base') + (l & 15) * 2048 + L.sig(l >> 4) * 16, V(2))
    p.waitcnt(vm=0)
    for k in range(8):
        p.valu('v_add_f32', V(32 + k), V(32 + k), V(40 + k))
        p.valu('v_add_f32', V(48 + k), V(48 + k), V(56 + k))
    for k in range(8):
        p.valu('v_add_f32', V(32 + k), V(32 + k), V(48 + k))
    pack_pair(p, V(20, 4), V(32, 4), V(36, 4))
    p.bstore(V(20, 4), V(2), O_SRD, 0)
    p.label('k3_end')
    p.raw('s_endpgm')
    p.pad_hazards()
    return p


HEADER = open(f'cdna_kernels/{NAME}.s.ref').read().split('; Override launch geometry')[0]


def kernel_text(name, prog, vgprs, sgprs=102):
    return f""".text
.globl {name}
.p2align 8
.type {name},@function
{name}:
{prog.text()}
.section .rodata,"a"
.p2align 6
.amdhsa_kernel {name}
  .amdhsa_next_free_vgpr {vgprs}
  .amdhsa_next_free_sgpr {sgprs}
  .amdhsa_accum_offset {(vgprs + 3) // 4 * 4}
  .amdhsa_group_segment_fixed_size 0
  .amdhsa_kernarg_size 104
  .amdhsa_user_sgpr_count 2
  .amdhsa_user_sgpr_kernarg_segment_ptr 1
  .amdhsa_system_sgpr_workgroup_id_x 1
.end_amdhsa_kernel
"""


def main(out):
    L.verify()
    k1, k2, k3 = gen_k1(), gen_k2(), gen_k3()
    txt = HEADER
    txt += f"; @launch kernel=attn_kernel grid=(512,1,1) block=(256,1,1) lds={LDS_K1}\n"
    txt += f"; @launch kernel=oproj_kernel grid=(256,1,1) block=(512,1,1) lds={LDS_K2}\n"
    txt += f"; @launch kernel=reduce_kernel grid=(832,1,1) block=(256,1,1) lds=0\n"
    txt += '.amdgcn_target "amdgcn-amd-amdhsa--gfx950"\n'
    txt += kernel_text('attn_kernel', k1, 256)
    txt += kernel_text('oproj_kernel', k2, 256)
    txt += kernel_text('reduce_kernel', k3, 64)
    open(out, 'w').write(txt)
    print("wrote", out, len(txt))


if __name__ == '__main__':
    for a in sys.argv[2:]:
        if a == 'prof':
            PROF = True
        elif '=' in a:
            k, v = a.split('=')
            globals()[k] = int(v)
    main(sys.argv[1] if len(sys.argv) > 1 else f'cdna_kernels/{NAME}.s')
```

```python
import math
import struct
import sys

from asmlib import Prog, V, S, E, var, ECompiler
import layout as L

NAME = 'concat_heads__mha_block_cached__mha_block_cached__near_ridge'
TILE = L.TILE
STEP = 2 * TILE
O_UNIT = 13 * 4096
PART_BASE = 0x2000000
PART_UNIT = 13 * 8192
LDS_TOTAL = 163840
P1_BASE = 2 * STEP
W_RING = 4 * TILE
X_BASE = P1_BASE + 2 * W_RING
X_SLOT = 13312
assert X_BASE + 3 * X_SLOT <= LDS_TOTAL

STAGE = 3
PROF = False
PROF_BASE = 0x8000000
KVNT = 1
STAGGER = 0
K2X = 32
SPIN_MAX = 200000


def f32bits(x):
    return struct.unpack('<I', struct.pack('<f', x))[0]


SCALE_C = (128 ** -0.5) * math.log2(math.e)

ACC0, QF0, S0, AB0, NEGM0, L0 = 128, 64, 32, 20, 16, 12
vKRD, vVRD, vKD, vVD = V(1), V(2), V(3), V(4)
vWD, vX = V(5), V(6)
T = [V(7), V(8), V(9), V(10), V(11)]
vWB, vXB, vWC, vXC, vWN = V(12), V(13), V(14), V(15), V(16)


def abuf4(k):
    return V(64 + 4 * (k % 4), 4)


def acc(j, t):
    return V(ACC0 + (j * 4 + t) * 4, 4)


def qf(t, s):
    return V(QF0 + (t * 4 + s) * 4, 4)


def sreg(t, tp):
    return V(S0 + t * 8 + tp * 4, 4)


def preg(t):
    return V(S0 + t * 8, 4)


def abuf(k):
    return V(AB0 + 4 * (k % 3), 4)


X_SRD, W_SRD, K_SRD, V_SRD, O_SRD = S(4, 4), S(8, 4), S(12, 4), S(16, 4), S(20, 4)
P_SRD, OUT_SRD, D_SRD, PR_SRD = S(24, 4), S(28, 4), S(32, 4), S(36, 4)
sPTR = 40
sX, sKQ, sB, sNT, sG, sW, sW8, sT0 = S(56), S(57), S(58), S(59), S(60), S(61), S(62), S(63)
sC, sNC, sTHR, sCNT, sFLAG, sTMP, sTMP2 = S(64), S(65), S(66), S(67), S(68), S(69), S(70)
sWB = S(71)
sA = [S(72 + i) for i in range(12)]
STAMP0 = 84


def stamp(p, k, force=False):
    if PROF and P1PROF and not force:
        return
    if PROF:
        p.raw(f's_memtime s[{STAMP0 + 2 * k}:{STAMP0 + 1 + 2 * k}]', 'smem')


_cst = [0]
P1PROF = 0


def cstamp(p, k, it):
    if not PROF:
        return
    _cst[0] += 1
    lab = f'cst{_cst[0]}'
    p.scmp('s_cmp_eq_u32', sCNT, it)
    p.branch('s_cbranch_scc0', lab)
    stamp(p, k, True)
    p.label(lab)


def stamp_flush(p, n):
    if not PROF:
        return
    p.waitcnt(vm=0, lgkm=0)
    p.salu('s_lshl_b32', sTMP, S(2), 3)
    p.salu('s_add_u32', sTMP, sTMP, sW8)
    p.salu('s_lshl_b32', sTMP, sTMP, 6)
    p.salu('s_add_u32', sTMP, sTMP, PROF_BASE)
    build_srd(p, PR_SRD, S(54), S(55), sTMP, 64)
    p.valu('v_mov_b32', T[1], 0)
    for k in range(n):
        p.valu('v_mov_b32', T[2], S(STAMP0 + 2 * k))
        p.bstore(T[2], T[1], PR_SRD, 0, off=4 * k)


def build_srd(p, srd, base_lo, base_hi, off_lo, nrec):
    n = srd[1]
    p.salu('s_add_u32', S(n), base_lo, off_lo)
    p.salu('s_addc_u32', S(n + 1), base_hi, 0)
    p.salu('s_and_b32', S(n + 1), S(n + 1), 0xffff)
    p.salu('s_mov_b32', S(n + 2), nrec)
    p.salu('s_mov_b32', S(n + 3), 0x20000)


def pack_pair(p, dst, a, b, scale=None):
    d = dst[1]
    if scale is not None:
        for k in range(4):
            p.valu('v_mul_f32', V(a[1] + k), V(a[1] + k), scale)
            p.valu('v_mul_f32', V(b[1] + k), V(b[1] + k), scale)
    p.valu('v_cvt_pk_bf16_f32', V(d), V(a[1]), V(a[1] + 1))
    p.valu('v_cvt_pk_bf16_f32', V(d + 1), V(a[1] + 2), V(a[1] + 3))
    p.valu('v_cvt_pk_bf16_f32', V(d + 2), V(b[1]), V(b[1] + 1))
    p.valu('v_cvt_pk_bf16_f32', V(d + 3), V(b[1] + 2), V(b[1] + 3))
    p.valu('v_permlane16_swap_b32', V(d), V(d + 2))
    p.valu('v_permlane16_swap_b32', V(d + 1), V(d + 3))


def xlane_reduce(p, op, x, t1):
    p.valu('v_mov_b32', t1, x)
    p.valu('v_permlane32_swap_b32', x, t1)
    p.valu(op, x, x, t1)
    p.valu('v_mov_b32', t1, x)
    p.valu('v_permlane16_swap_b32', x, t1)
    p.valu(op, x, x, t1)


def kvf():
    return 'nt' if KVNT else ''


def zero_acc(p, nt):
    for j in range(8):
        for t in range(nt):
            for r in range(4):
                p.valu('v_mov_b32', V(acc(j, t)[1] + r), 0)


def kv_off_static(c):
    return (c & 3) * 2 * STEP


def signal_and_wait(p, inc, shift, lab):
    p.waitcnt(vm=0)
    p.barrier()
    p.scmp('s_cmp_lg_u32', sW8, 0)
    p.branch('s_cbranch_scc1', f'{lab}_join')
    p.salu('s_mov_b64', S(sA[10][1], 2), 'exec')
    p.salu('s_mov_b64', 'exec', 1)
    p.valu('v_mov_b32', T[2], inc)
    p.raw(f'buffer_atomic_add v{T[2][1]}, v{T[3][1]}, s[32:35], 0 offen sc1', 'store', (),
          {('v', T[2][1]), ('v', T[3][1])})
    p.salu('s_mov_b32', sTMP2, 0)
    p.label(f'{lab}_spin')
    p.raw(f'buffer_load_dword v{T[2][1]}, v{T[4][1]}, s[32:35], 0 offen sc1', 'vmem', {('v', T[2][1])},
          {('v', T[4][1])})
    p.waitcnt(vm=0)
    p.valu('v_readfirstlane_b32', sTMP, T[2])
    p.salu('s_lshr_b32', sTMP, sTMP, shift)
    p.salu('s_and_b32', sTMP, sTMP, 0xffff)
    p.scmp('s_cmp_ge_u32', sTMP, 4)
    p.branch('s_cbranch_scc1', f'{lab}_done')
    p.raw('s_sleep 2')
    p.salu('s_add_u32', sTMP2, sTMP2, 1)
    p.scmp('s_cmp_lt_u32', sTMP2, SPIN_MAX)
    p.branch('s_cbranch_scc1', f'{lab}_spin')
    p.label(f'{lab}_done')
    p.salu('s_mov_b64', 'exec', S(sA[10][1], 2))
    p.raw('buffer_inv sc1')
    p.waitcnt(vm=0)
    p.label(f'{lab}_join')
    p.barrier()


def attn_loop(p, nt, sfx, grp, kvdma, sKVB):
    sKOFF, sOFF, sM0B, sDEL = sA[0:4]
    p.label(f'chunk_top{sfx}')
    if P1PROF == 2:
        cstamp(p, 0, 8)
        cstamp(p, 7, 9)
    if grp == 0:
        p.waitcnt(vm=8)
        if P1PROF == 2:
            cstamp(p, 1, 8)
        p.barrier()
        if P1PROF == 2:
            cstamp(p, 2, 8)
    p.label(f'qk_start{sfx}')
    kfr = [(tp, s) for tp in range(2) for s in range(4)]

    def kissue(k):
        tp, s = kfr[k]
        p.ds_read('ds_read_b128', abuf(k), vKRD, tp * L.K_T + s * L.K_S)
    for k in range(3):
        kissue(k)
    for k, (tp, s) in enumerate(kfr):
        p.waitcnt(lgkm=min(7 - k, 2))
        for t in range(nt):
            p.mfma(sreg(t, tp), abuf(k), qf(t, s), 0 if s == 0 else sreg(t, tp))
        if k + 3 < 8:
            kissue(k + 3)
    if P1PROF == 2:
        cstamp(p, 3, 8)
    p.scmp('s_cmp_eq_u32', sFLAG, 1)
    p.branch('s_cbranch_scc1', f'rescale{sfx}')
    if grp == 1:
        p.waitcnt(vm=4)
        if P1PROF == 2:
            cstamp(p, 1, 8)
        p.barrier()
        if P1PROF == 2:
            cstamp(p, 2, 8)
        p.scmp('s_cmp_eq_u32', sFLAG, 3)
        p.branch('s_cbranch_scc1', f'rescale{sfx}')
    p.label(f'softmax{sfx}')
    p.nop(5)
    for tp in range(2):
        for t in range(nt):
            for r in range(4):
                x = V(sreg(t, tp)[1] + r)
                p.valu('v_fma_f32', x, x, sC, V(NEGM0 + t))
            for r in range(4):
                x = V(sreg(t, tp)[1] + r)
                p.valu('v_exp_f32', x, x)
    for t in range(nt):
        b = S0 + t * 8
        p.valu('v_add_f32', T[t], V(b), V(b + 1))
        p.valu('v_add_f32', T[4], V(b + 2), V(b + 3))
        p.valu('v_add_f32', T[t], T[t], V(b + 4))
        p.valu('v_add_f32', T[4], T[4], V(b + 5))
        p.valu('v_add_f32', T[t], T[t], V(b + 6))
        p.valu('v_add_f32', T[4], T[4], V(b + 7))
        p.valu('v_add_f32', T[t], T[t], T[4])
    p.valu('v_max3_f32', T[4], T[0], T[1], T[2])
    if nt == 4:
        p.valu('v_max_f32', T[4], T[4], T[3])
    p.valu('v_cmp_nge_f32', 'vcc', sTHR, T[4])
    p.branch('s_cbranch_vccnz', f'redo{sfx}')
    p.label(f'cont{sfx}')
    p.salu('s_mov_b32', sFLAG, 0)
    if P1PROF == 2:
        cstamp(p, 4, 8)

    def vissue(k):
        b = abuf(k)
        p.ds_read('ds_read_b64_tr_b16', V(b[1], 2), vVRD, TILE + 32 * k)
        p.ds_read('ds_read_b64_tr_b16', V(b[1] + 2, 2), vVRD, TILE + 32 * k + L.V_RD2)
    for k in range(3):
        vissue(k)
    for t in range(nt):
        p.valu('v_add_f32', V(L0 + t), V(L0 + t), T[t])
        b = S0 + t * 8
        for k in range(4):
            p.valu('v_cvt_pk_bf16_f32', V(b + k), V(b + 2 * k), V(b + 2 * k + 1))
    if P1PROF == 2:
        cstamp(p, 5, 8)
    p.salu('s_add_u32', sTMP, sCNT, 3)
    p.salu('s_and_b32', sTMP, sTMP, 3)
    p.salu('s_mul_i32', sM0B, sTMP, 2 * STEP)
    p.salu('s_add_u32', sM0B, sM0B, sKVB)
    p.salu('s_add_u32', sCNT, sCNT, 1)
    p.salu('s_and_b32', sTMP, sCNT, 3)
    p.salu('s_mul_i32', sTMP, sTMP, 2 * STEP)
    p.salu('s_sub_u32', sDEL, sTMP, sOFF)
    p.salu('s_mov_b32', sOFF, sTMP)
    for j in range(8):
        p.waitcnt(lgkm=2 * min(7 - j, 2))
        for t in range(nt):
            p.mfma(acc(j, t), abuf(j), preg(t), acc(j, t))
        if j + 3 < 8:
            vissue(j + 3)
        if j < 4:
            kvdma(sKOFF, 0, j, m0base=sM0B)
        if P1PROF == 2 and j == 3:
            cstamp(p, 6, 9)
    p.salu('s_add_u32', sKOFF, sKOFF, 8192)
    p.valu('v_add_u32', vKRD, sDEL, vKRD)
    p.valu('v_add_u32', vVRD, sDEL, vVRD)
    p.scmp('s_cmp_lt_u32', sCNT, 16)
    p.branch('s_cbranch_scc1', f'chunk_top{sfx}')


def attn_ool(p, nt, sfx):
    p.label(f'redo{sfx}')
    p.scmp('s_cmp_eq_u32', sFLAG, 2)
    p.branch('s_cbranch_scc1', f'cont{sfx}')
    p.salu('s_mov_b32', sFLAG, 1)
    p.branch('s_branch', f'qk_start{sfx}')

    p.label(f'rescale{sfx}')
    p.nop(7)
    for t in range(nt):
        b = S0 + t * 8
        p.valu('v_max3_f32', T[0], V(b), V(b + 1), V(b + 2))
        p.valu('v_max3_f32', T[1], V(b + 3), V(b + 4), V(b + 5))
        p.valu('v_max3_f32', T[0], T[0], V(b + 6), V(b + 7))
        p.valu('v_max_f32', T[0], T[0], T[1])
        xlane_reduce(p, 'v_max_f32', T[0], T[1])
        p.valu('v_mul_f32', T[0], sNC, T[0])
        p.valu('v_min_f32', T[0], V(NEGM0 + t), T[0])
        p.valu('v_sub_f32', T[1], T[0], V(NEGM0 + t))
        p.valu('v_exp_f32', T[1], T[1])
        p.valu('v_mov_b32', V(NEGM0 + t), T[0])
        p.valu('v_mul_f32', V(L0 + t), V(L0 + t), T[1])
        for j in range(8):
            for r in range(4):
                a = V(acc(j, t)[1] + r)
                p.valu('v_mul_f32', a, a, T[1])
    p.salu('s_mov_b32', sFLAG, 2)
    p.branch('s_branch', f'softmax{sfx}')


def body(p, nt, sfx):
    sRG, sKS, sKW, sKX, sWD, sXD, sX1, sX2, sKVB, sWDB, sR4 = sA[0:11]

    def xreg(n, t):
        return V(32 + (n % 2) * 16 + t * 4, 4)

    def kvdma(chunk_off_sgpr, lds_off, q, m0base=None):
        base, voff, srd, off = [(0, vKD, K_SRD, 0), (L.BLK2_K - 256, vKD, K_SRD, 256),
                                (TILE, vVD, V_SRD, 0), (TILE + L.BLK2_T - 256, vVD, V_SRD, 256)][q]
        p.salu('s_add_u32', 'm0', sKVB if m0base is None else m0base, lds_off + base)
        p.dma(voff, srd, chunk_off_sgpr, off=off, flags=kvf())

    def kv_static(c):
        p.salu('s_mov_b32', sTMP2, c * 8192)
        for q in range(4):
            kvdma(sTMP2, kv_off_static(c), q)

    def wdma(e, slot_sgpr_or_int, kw):
        if isinstance(slot_sgpr_or_int, int):
            p.salu('s_add_u32', 'm0', sWDB, slot_sgpr_or_int + e * L.BLK2_T)
        else:
            p.salu('s_add_u32', 'm0', slot_sgpr_or_int, e * L.BLK2_T)
        if e == 0:
            p.dma(vWD, W_SRD, kw)
        else:
            p.salu('s_add_u32', sTMP, kw, 8192)
            p.dma(vWD, W_SRD, sTMP)

    def xdma(e, slot, kx):
        tsg = (sX1, sX2)[e]
        p.salu('s_lshr_b32', sTMP, tsg, 4)
        p.salu('s_add_u32', 'm0', sTMP, slot)
        p.salu('s_add_u32', sTMP, tsg, kx)
        p.dma(vX, X_SRD, sTMP)

    stamp(p, 1)
    for st in range(3):
        if st:
            p.salu('s_add_u32', sKS, sKS, 1)
            p.salu('s_and_b32', sKS, sKS, 15)
        p.salu('s_lshl_b32', sKW, sKS, 18)
        p.salu('s_lshl_b32', sKX, sKS, 6)
        wdma(0, st * TILE, sKW)
        wdma(1, st * TILE, sKW)
        xdma(0, X_BASE + st * X_SLOT, sKX)
        xdma(1, X_BASE + st * X_SLOT, sKX)
    kv_static(0)
    zero_acc(p, nt)
    p.salu('s_mov_b32', sRG, 0)
    p.salu('s_mov_b32', sR4, 0)
    p.salu('s_mov_b32', sCNT, 0)
    p.waitcnt(vm=12)
    p.barrier()
    for t in range(nt):
        p.ds_read('ds_read_b128', xreg(0, t), vXB, t * 1024)
    for k in range(3):
        b = abuf4(k)
        p.ds_read('ds_read_b64_tr_b16', V(b[1], 2), vWB, 32 * k)
        p.ds_read('ds_read_b64_tr_b16', V(b[1] + 2, 2), vWB, 32 * k + L.W_RD2)
    p.valu('v_mov_b32', vWC, vWB)
    p.valu('v_add_u32', vXC, X_SLOT, vXB)
    stamp(p, 2)
    p.label(f'p1_loop{sfx}')
    for par in range(2):
        def book_a():
            p.salu('s_mul_i32', sXD, sRG, X_SLOT)
            p.salu('s_add_u32', sXD, sXD, X_BASE)
            p.salu('s_add_u32', sWD, sR4, 3 * TILE)
            p.scmp('s_cmp_ge_u32', sWD, 4 * TILE)
            p.salu('s_cselect_b32', sTMP, 4 * TILE, 0)
            p.salu('s_sub_u32', sWD, sWD, sTMP)
            p.salu('s_add_u32', sWD, sWD, sWDB)
            p.salu('s_add_u32', sR4, sR4, TILE)
            p.scmp('s_cmp_eq_u32', sR4, 4 * TILE)
            p.salu('s_cselect_b32', sR4, 0, sR4)
            p.valu('v_add_u32', vWN, sR4, vWB)
            p.salu('s_add_u32', sKS, sKS, 1)
            p.salu('s_and_b32', sKS, sKS, 15)
            p.salu('s_lshl_b32', sKW, sKS, 18)
            p.salu('s_lshl_b32', sKX, sKS, 6)

        def book_b():
            p.salu('s_add_u32', sRG, sRG, 1)
            p.scmp('s_cmp_eq_u32', sRG, 3)
            p.salu('s_cselect_b32', sRG, 0, sRG)
            p.salu('s_add_u32', sTMP, sRG, 1)
            p.scmp('s_cmp_eq_u32', sTMP, 3)
            p.salu('s_cselect_b32', sTMP, 0, sTMP)
            p.salu('s_mul_i32', sTMP, sTMP, X_SLOT)
            p.valu('v_add_u32', vXC, sTMP, vXB)
        if P1PROF == 1:
            cstamp(p, 0 if par == 0 else 7, 3)
        p.scmp('s_cmp_eq_u32', sCNT, 0)
        p.branch('s_cbranch_scc1', f'p1_w{par}{sfx}')
        p.waitcnt(vm=4)
        p.label(f'p1_w{par}{sfx}')
        p.waitcnt(vm=8)
        if P1PROF == 1 and par == 0:
            cstamp(p, 1, 3)
        p.barrier()
        if P1PROF == 1 and par == 0:
            cstamp(p, 2, 3)
        extra = {0: book_a, 1: lambda: wdma(0, sWD, sKW), 2: lambda: wdma(1, sWD, sKW),
                 4: lambda: xdma(0, sXD, sKX), 5: lambda: xdma(1, sXD, sKX), 6: book_b}
        for j in range(8):
            p.waitcnt(lgkm=4 + (nt if j in (1, 2, 3) else 0))
            if P1PROF == 1 and par == 0 and j in (1, 3, 4, 6):
                cstamp(p, {1: 3, 3: 4, 4: 5, 6: 6}[j], 3)
            for t in range(nt):
                p.mfma(acc(j, t), abuf4(j), xreg(par, t), acc(j, t))
            b = abuf4(j + 3)
            base = vWC if j + 3 < 8 else vWN
            kk = (j + 3) % 8
            p.ds_read('ds_read_b64_tr_b16', V(b[1], 2), base, 32 * kk)
            p.ds_read('ds_read_b64_tr_b16', V(b[1] + 2, 2), base, 32 * kk + L.W_RD2)
            if j == 0:
                for t in range(nt):
                    p.ds_read('ds_read_b128', xreg(par + 1, t), vXC, t * 1024)
            if j in extra:
                extra[j]()
        p.valu('v_mov_b32', vWC, vWN)
    p.salu('s_add_u32', sCNT, sCNT, 1)
    p.scmp('s_cmp_lt_u32', sCNT, 8)
    p.branch('s_cbranch_scc1', f'p1_loop{sfx}')
    p.waitcnt(lgkm=0)
    stamp(p, 3)
    for t in range(nt):
        for s in range(4):
            pack_pair(p, qf(t, s), acc(2 * s, t), acc(2 * s + 1, t))
    sKOFF, sOFF, sM0B, sDEL = sA[0:4]
    ec = ECompiler(p, {'l': V(0), 'gb': sTMP2}, T[:])
    p.salu('s_mul_i32', sTMP2, sG, STEP)
    ec.emit(L.K_RD + var('gb'), vKRD)
    ec.emit(L.V_RD + var('gb'), vVRD)
    for t in range(nt):
        p.valu('v_mov_b32', V(NEGM0 + t), 0x7f800000)
        p.valu('v_mov_b32', V(L0 + t), 0)
    p.salu('s_mov_b32', sCNT, 0)
    p.salu('s_mov_b32', sFLAG, 1)
    p.salu('s_mov_b32', sKOFF, 3 * 8192)
    p.salu('s_mov_b32', sOFF, 0)
    p.waitcnt(vm=0)
    p.barrier()
    kv_static(1)
    kv_static(2)

    if STAGGER:
        p.scmp('s_cmp_eq_u32', sG, 0)
        p.branch('s_cbranch_scc0', f'p2_g1{sfx}')
        attn_loop(p, nt, sfx + 'a', 0, kvdma, sKVB)
        p.branch('s_branch', f'p2_done{sfx}')
        p.label(f'p2_g1{sfx}')
        p.salu('s_mov_b32', sFLAG, 3)
        attn_loop(p, nt, sfx + 'b', 1, kvdma, sKVB)
        p.label(f'p2_done{sfx}')
    else:
        attn_loop(p, nt, sfx + 'a', 0, kvdma, sKVB)
    stamp(p, 4)

    osc = 'sc1' if STAGE >= 2 else 'nt'
    p.valu('v_lshlrev_b32', T[0], 4, V(0))
    p.salu('s_lshl_b32', sTMP, sT0, 12)
    p.valu('v_add_u32', T[0], sTMP, T[0])
    for t in range(nt):
        xlane_reduce(p, 'v_add_f32', V(L0 + t), T[1])
        p.valu('v_rcp_f32', V(L0 + t), V(L0 + t))
    for t in range(nt):
        p.salu('s_mov_b32', sTMP, t * 4096)
        for s in range(4):
            d = qf(t, s)
            pack_pair(p, d, acc(2 * s, t), acc(2 * s + 1, t), scale=V(L0 + t))
            p.bstore(d, T[0], O_SRD, sTMP, off=s * 1024, flags=osc)
    if STAGE == 1:
        stamp(p, 5)
        stamp_flush(p, 8)
        p.raw('s_endpgm')
    else:
        phase3(p, nt, sfx)

    attn_ool(p, nt, sfx + 'a')
    if STAGGER:
        attn_ool(p, nt, sfx + 'b')


def phase3(p, nt, sfx):
    sKB, sKWo, sKAP, sWDB = sA[0:4]

    def breg(n, t):
        return V(64 + (n % 4) * 16 + t * 4, 4)

    def adv_k():
        p.salu('s_add_u32', sKAP, sKAP, 2)
        p.salu('s_lshr_b32', sKB, sKAP, 2)
        p.salu('s_mul_i32', sKB, sKB, O_UNIT)
        p.salu('s_and_b32', sTMP, sKAP, 3)
        p.salu('s_lshl_b32', sTMP, sTMP, 10)
        p.salu('s_add_u32', sKB, sKB, sTMP)
        p.salu('s_lshl_b32', sKWo, sKAP, 15)

    def bload1(step, t):
        if t == 0:
            p.bload(breg(step, t), vX, X_SRD, sKB, flags='sc1')
        else:
            p.salu('s_add_u32', sTMP, sKB, 4096 * t)
            p.bload(breg(step, t), vX, X_SRD, sTMP, flags='sc1')

    def wdma1(step, e):
        p.salu('s_add_u32', 'm0', sWDB, (step % 4) * TILE + e * L.BLK2_T - e * 1024)
        p.dma(vWD, W_SRD, sKWo, off=e * 1024)

    p.salu('s_lshl_b32', sTMP, sX, 3)
    p.salu('s_add_u32', sTMP, sTMP, sB)
    p.salu('s_lshl_b32', sTMP2, sTMP, 2)
    p.salu('s_add_u32', sKAP, sTMP2, sKQ)
    p.salu('s_lshl_b32', sKAP, sKAP, 2)
    p.valu('v_mov_b32', T[3], sKAP)
    p.valu('v_mov_b32', T[4], sKAP)
    p.salu('s_lshl_b32', sTMP, sTMP, 5)
    p.salu('s_lshl_b32', sTMP2, sKQ, 3)
    p.salu('s_add_u32', sTMP, sTMP, sTMP2)
    p.salu('s_mul_i32', sTMP, sTMP, O_UNIT)
    build_srd(p, X_SRD, S(54), S(55), sTMP, 8 * O_UNIT)
    p.salu('s_lshl_b32', sTMP, sKQ, 20)
    p.salu('s_lshl_b32', sTMP2, sNT, 8)
    p.salu('s_add_u32', sTMP, sTMP, sTMP2)
    p.salu('s_sub_u32', sTMP2, 1 << 20, sTMP2)
    build_srd(p, W_SRD, S(48), S(49), sTMP, sTMP2)
    p.salu('s_mul_i32', sTMP2, sG, 4 * TILE)
    p.salu('s_add_u32', sWDB, sWB, sTMP2)
    ec = ECompiler(p, {'l': V(0), 'w': sW, 't0': sT0, 'gb': sTMP2}, [T[0], T[1], T[2], V(12), V(13)])
    l = var('l')
    ec.emit(L.W_RD + var('gb'), vKRD)
    ec.emit(L.WO_ROW * 1024 + (l & 15) * 16, vWD)
    ec.emit((var('t0') << 12) + l * 16, vX)
    zero_acc(p, nt)
    p.barrier()
    p.salu('s_sub_u32', sKAP, sG, 2)
    for st in range(3):
        adv_k()
        wdma1(st, 0)
        wdma1(st, 1)
    signal_and_wait(p, 1, 0, f'sy1{sfx}')
    stamp(p, 5)
    p.salu('s_sub_u32', sKAP, sG, 2)
    for st in range(3):
        adv_k()
        for t in range(nt):
            bload1(st, t)
    p.salu('s_mov_b32', sCNT, 0)
    p.label(f'p3_loop{sfx}')
    for s in range(4):
        p.waitcnt(vm=2 * nt if False else 2 * (2 + nt))
        p.barrier()

        def issue(k):
            b = abuf(k)
            off = s * TILE + 32 * k
            p.ds_read('ds_read_b64_tr_b16', V(b[1], 2), vKRD, off)
            p.ds_read('ds_read_b64_tr_b16', V(b[1] + 2, 2), vKRD, off + L.W_RD2)
        for k in range(3):
            issue(k)
        extra = {j: [] for j in range(8)}
        extra[0].append(adv_k)
        extra[1].append(lambda: wdma1(s + 3, 0))
        extra[2].append(lambda: wdma1(s + 3, 1))
        for t in range(nt):
            extra[3 + t].append(lambda t=t: bload1(s + 3, t))
        for j in range(8):
            p.waitcnt(lgkm=2 * min(7 - j, 2))
            if j == 0 and s < 2:
                p.scmp('s_cmp_lg_u32', sCNT, 0)
                p.branch('s_cbranch_scc1', f'p3_w{s}{sfx}')
                p.waitcnt(vm=(2 - s) * nt + s * (2 + nt))
                p.label(f'p3_w{s}{sfx}')
            for t in range(nt):
                p.mfma(acc(j, t), abuf(j), breg(s, t), acc(j, t))
            if j + 3 < 8:
                issue(j + 3)
            for f in extra[j]:
                f()
    p.salu('s_add_u32', sCNT, sCNT, 1)
    p.scmp('s_cmp_lt_u32', sCNT, 4)
    p.branch('s_cbranch_scc1', f'p3_loop{sfx}')
    stamp(p, 6)
    p.waitcnt(vm=0)
    p.barrier()
    p.valu('v_lshlrev_b32', T[0], 4, V(0))
    p.salu('s_lshl_b32', sTMP, sT0, 13)
    p.valu('v_add_u32', T[0], sTMP, T[0])
    p.scmp('s_cmp_eq_u32', sG, 0)
    p.branch('s_cbranch_scc1', f'p3_g0{sfx}')
    for t in range(nt):
        for j in range(8):
            p.ds_write('ds_write_b128', T[0], acc(j, t), t * 8192 + j * 1024)
    p.waitcnt(lgkm=0)
    p.barrier()
    if STAGE >= 3:
        p.barrier()
        p.barrier()
    stamp(p, 7)
    stamp_flush(p, 8)
    p.raw('s_endpgm')
    p.label(f'p3_g0{sfx}')
    p.barrier()
    for t in range(nt):
        for j in range(8):
            p.ds_read('ds_read_b128', V(64 + (j + 8 * (t % 2)) * 4, 4), T[0], t * 8192 + j * 1024)
        p.waitcnt(lgkm=0)
        for j in range(8):
            for r in range(4):
                a = V(acc(j, t)[1] + r)
                p.valu('v_add_f32', a, a, V(64 + (j + 8 * (t % 2)) * 4 + r))
        if STAGE == 2:
            for jh in range(2):
                p.salu('s_mov_b32', sTMP, t * 8192 + jh * 4096)
                for jj in range(4):
                    p.bstore(acc(jh * 4 + jj, t), T[0], P_SRD, sTMP, off=jj * 1024)
        else:
            for jh in range(2):
                p.salu('s_mov_b32', sTMP, t * 8192 + jh * 4096)
                for jj in range(4):
                    p.bstore(acc(jh * 4 + jj, t), T[0], P_SRD, sTMP, off=jj * 1024, flags='sc1')
    if STAGE == 2:
        stamp(p, 7)
        stamp_flush(p, 8)
        p.raw('s_endpgm')
        return
    p.salu('s_lshl_b32', sTMP, sX, 3)
    p.salu('s_add_u32', sTMP, sTMP, sB)
    p.salu('s_lshl_b32', sTMP, sTMP, 2)
    p.salu('s_add_u32', sTMP, sTMP, sNT)
    p.salu('s_lshl_b32', sTMP2, sTMP, 2)
    p.valu('v_mov_b32', T[3], sTMP2)
    p.valu('v_mov_b32', T[4], sTMP2)
    p.salu('s_mul_i32', sTMP, sTMP, PART_UNIT)
    p.salu('s_add_u32', sTMP, sTMP, PART_BASE)
    build_srd(p, X_SRD, S(54), S(55), sTMP, 193 * PART_UNIT)
    signal_and_wait(p, 0x10000, 16, f'sy2{sfx}')
    p.salu('s_lshl_b32', sKB, sKQ, 11)
    for t in range(nt):
        for src in range(4):
            p.salu('s_add_u32', sTMP, sKB, src * 64 * PART_UNIT + t * 8192)
            for jj in range(2):
                p.bload(V(64 + ((t * 4 + src) * 2 + jj) * 4, 4), T[0], X_SRD, sTMP, off=jj * 1024, flags='sc1')
    p.salu('s_mul_i32', sTMP, sB, 208)
    p.salu('s_lshl_b32', sTMP2, sT0, 4)
    p.salu('s_add_u32', sTMP, sTMP, sTMP2)
    p.salu('s_lshl_b32', sTMP, sTMP, 11)
    p.salu('s_lshl_b32', sTMP2, sX, 10)
    p.salu('s_add_u32', sTMP, sTMP, sTMP2)
    p.salu('s_lshl_b32', sTMP2, sNT, 8)
    p.salu('s_add_u32', sTMP, sTMP, sTMP2)
    p.salu('s_lshl_b32', sTMP2, sKQ, 6)
    p.salu('s_add_u32', sTMP, sTMP, sTMP2)
    ec = ECompiler(p, {'l': V(0), 'base': sTMP}, [T[1], T[2], V(12), V(13)])
    ec.emit(var('base') + (l & 15) * 2048 + L.sig(l >> 4) * 16, V(14))
    for t in range(nt):
        p.waitcnt(vm=(nt - 1 - t) * 8 + t)
        base = 64 + t * 32
        for k in range(8):
            p.valu('v_add_f32', V(base + k), V(base + k), V(base + 8 + k))
            p.valu('v_add_f32', V(base + 16 + k), V(base + 16 + k), V(base + 24 + k))
        for k in range(8):
            p.valu('v_add_f32', V(base + k), V(base + k), V(base + 16 + k))
        pack_pair(p, V(20 + 4 * (t % 3), 4), V(base, 4), V(base + 4, 4))
        p.salu('s_mov_b32', sTMP2, t * 32768)
        p.bstore(V(20 + 4 * (t % 3), 4), V(14), OUT_SRD, sTMP2)
    stamp(p, 7)
    stamp_flush(p, 8)
    p.raw('s_endpgm')


def gen_main():
    p = Prog()
    p.scmp('s_cmp_ge_u32', S(2), 256)
    p.branch('s_cbranch_scc1', 'k_end')
    stamp(p, 0)
    p.salu('s_and_b32', sTMP, S(2), 7)
    p.salu('s_lshr_b32', sTMP2, S(2), 3)
    p.salu('s_lshr_b32', sX, sTMP, 2)
    p.salu('s_and_b32', sKQ, sTMP, 3)
    p.salu('s_lshr_b32', sB, sTMP2, 2)
    p.salu('s_and_b32', sNT, sTMP2, 3)
    p.salu('s_mul_i32', sTMP, sX, 40)
    p.salu('s_add_u32', S(72), S(0), sTMP)
    p.salu('s_addc_u32', S(73), S(1), 0)
    p.sload('s_load_dwordx8', S(40, 8), S(72, 2), 0)
    p.sload('s_load_dwordx2', S(48, 2), S(72, 2), 32)
    p.sload('s_load_dwordx4', S(50, 4) if False else S(52, 4), S(0, 2), 88)
    p.sload('s_load_dwordx2', S(50, 2), S(0, 2), 80)
    p.valu('v_lshrrev_b32', T[0], 6, V(0))
    p.valu('v_readfirstlane_b32', sW8, T[0])
    p.valu('v_and_b32', V(0), 63, V(0))
    p.salu('s_lshr_b32', sG, sW8, 2)
    p.salu('s_and_b32', sW, sW8, 3)
    p.salu('s_mul_i32', sWB, sW, L.WBASE)
    p.salu('s_mul_i32', sT0, sW, 3)
    p.scmp('s_cmp_gt_u32', sW, sG)
    p.salu('s_addc_u32', sT0, sT0, 0)
    p.salu('s_mov_b32', sC, f32bits(SCALE_C))
    p.salu('s_mov_b32', sNC, f32bits(-SCALE_C))
    p.salu('s_mov_b32', sTHR, f32bits(4096.0))
    sRG, sKS, sKW, sKX, sWD, sXD, sX1, sX2, sKVB, sWDB = sA[0:10]
    p.salu('s_mul_i32', sTMP2, sG, W_RING)
    ec = ECompiler(p, {'l': V(0), 'w': sW, 't0': sT0, 'gw': sTMP2}, T[:])
    l = var('l')
    ec.emit(L.W_RD + var('gw') + P1_BASE, vWB)
    ec.emit(L.K_ROW * 256 + (l & 15) * 16, vKD)
    ec.emit(L.V_ROW * 256 + (l & 15) * 16, vVD)
    ec.emit(L.W_ROW * 8192 + (l & 15) * 16, vWD)
    xr = l >> 2
    ec.emit(xr * 1024 + (((l & 3) ^ ((4 - (xr >> 2)) & 3)) << 4), vX)
    xi = l & 15
    ec.emit((var('t0') << 10) + xi * 64 + (((l >> 4) ^ ((4 - (xi >> 2)) & 3)) << 4) + X_BASE, vXB)
    p.waitcnt(lgkm=0)
    p.salu('s_add_u32', sWDB, sWB, sTMP2)
    p.salu('s_add_u32', sWDB, sWDB, P1_BASE)
    p.salu('s_mul_i32', sKVB, sG, STEP)
    p.salu('s_add_u32', sKVB, sKVB, sWB)
    p.salu('s_lshl_b32', sX1, sW8, 14)
    p.salu('s_add_u32', sX2, sW8, 8)
    p.scmp('s_cmp_ge_u32', sX2, 13)
    p.salu('s_cselect_b32', sTMP, 13, 0)
    p.salu('s_sub_u32', sX2, sX2, sTMP)
    p.salu('s_lshl_b32', sX2, sX2, 14)
    p.salu('s_lshr_b32', sKS, S(2), 2)
    p.salu('s_and_b32', sKS, sKS, 14)
    p.salu('s_lshl_b32', sTMP, sKQ, 3)
    p.salu('s_lshl_b32', sTMP2, sNT, 1)
    p.salu('s_add_u32', sTMP, sTMP, sTMP2)
    p.salu('s_add_u32', sRG, sTMP, sG)
    p.salu('s_mul_i32', sTMP, sB, 212992)
    build_srd(p, X_SRD, S(40), S(41), sTMP, 212992)
    p.salu('s_lshl_b32', sTMP, sB, 5)
    p.salu('s_add_u32', sTMP, sTMP, sRG)
    p.salu('s_lshl_b32', sTMP2, sTMP, 17)
    build_srd(p, K_SRD, S(42), S(43), sTMP2, 131072)
    build_srd(p, V_SRD, S(44), S(45), sTMP2, 131072)
    p.salu('s_lshl_b32', sTMP2, sX, 8)
    p.salu('s_add_u32', sTMP, sTMP, sTMP2)
    p.salu('s_mul_i32', sTMP, sTMP, O_UNIT)
    build_srd(p, O_SRD, S(54), S(55), sTMP, O_UNIT)
    p.salu('s_lshl_b32', sTMP, sRG, 8)
    p.salu('s_sub_u32', sTMP2, 512 * 8192, sTMP)
    build_srd(p, W_SRD, S(46), S(47), sTMP, sTMP2)
    p.salu('s_lshl_b32', sTMP, sKQ, 4)
    p.salu('s_lshl_b32', sTMP2, sX, 3)
    p.salu('s_add_u32', sTMP, sTMP, sTMP2)
    p.salu('s_add_u32', sTMP, sTMP, sB)
    p.salu('s_lshl_b32', sTMP, sTMP, 2)
    p.salu('s_add_u32', sTMP, sTMP, sNT)
    p.salu('s_mul_i32', sTMP, sTMP, PART_UNIT)
    p.salu('s_add_u32', sTMP, sTMP, PART_BASE)
    build_srd(p, P_SRD, S(54), S(55), sTMP, PART_UNIT)
    build_srd(p, OUT_SRD, S(50), S(51), 0, 8 * 208 * 1024 * 2)
    build_srd(p, D_SRD, S(52), S(53), 0, 256)
    p.scmp('s_cmp_eq_u32', sW, sG)
    p.branch('s_cbranch_scc0', 'k_nt3')
    body(p, 4, '_4')
    p.label('k_nt3')
    body(p, 3, '_3')
    p.label('k_end')
    p.raw('s_endpgm')
    p.pad_hazards()
    return p


def main(out):
    import gen
    gen.K2X = K2X
    L.verify()
    k = gen_main()
    txt = gen.HEADER
    txt += f"; @launch kernel=mha_kernel grid=(256,1,1) block=(512,1,1) lds={LDS_TOTAL}\n"
    if STAGE == 1:
        txt += f"; @launch kernel=oproj_kernel grid=(256,1,1) block=(512,1,1) lds={gen.LDS_K2}\n"
    if STAGE <= 2:
        txt += f"; @launch kernel=reduce_kernel grid=(832,1,1) block=(256,1,1) lds=0\n"
    txt += '.amdgcn_target "amdgcn-amd-amdhsa--gfx950"\n'
    txt += gen.kernel_text('mha_kernel', k, 256)
    if STAGE == 1:
        txt += gen.kernel_text('oproj_kernel', gen.gen_k2(), 256)
    if STAGE <= 2:
        txt += gen.kernel_text('reduce_kernel', gen.gen_k3(), 64)
    open(out, 'w').write(txt)
    print("wrote", out, len(txt))


if __name__ == '__main__':
    for a in sys.argv[2:]:
        if a == 'prof':
            PROF = True
        elif '=' in a:
            k_, v_ = a.split('=')
            globals()[k_] = int(v_)
    main(sys.argv[1])
```

```python
import math
import struct
import sys

from asmlib import Prog, V, S, E, var, ECompiler
import layout as L

NAME = 'concat_heads__mha_block_cached__mha_block_cached__near_ridge'
TILE = L.TILE
STEP = 2 * TILE
O_UNIT = 13 * 4096
PART_BASE = 0x2000000
PART_UNIT = 13 * 8192
LDS_TOTAL = 163840
P1_BASE = 2 * STEP
W_RING = 4 * TILE
X_BASE = P1_BASE + 2 * W_RING
X_SLOT = 13312
assert X_BASE + 3 * X_SLOT <= LDS_TOTAL

STAGE = 1
PROF = False
PROF_BASE = 0x8000000
KVNT = 1
ILV = 0
PK = 0
WOPF = 0
STAGGER = 0
K2X = 544
SPIN_MAX = 200000


def f32bits(x):
    return struct.unpack('<I', struct.pack('<f', x))[0]


SCALE_C = (128 ** -0.5) * math.log2(math.e)

ACC0, QF0, S0, AB0, NEGM0, L0 = 128, 64, 32, 20, 16, 12
vKRD, vVRD, vKD, vVD = V(1), V(2), V(3), V(4)
vWD, vX = V(5), V(6)
T = [V(7), V(8), V(9), V(10), V(11)]
vWB, vXB, vWC, vXC, vWN = V(12), V(13), V(14), V(15), V(16)


def abuf4(k):
    return V(64 + 4 * (k % 4), 4)


def acc(j, t):
    return V(ACC0 + (j * 4 + t) * 4, 4)


def qf(t, s):
    return V(QF0 + (t * 4 + s) * 4, 4)


def sreg(t, tp):
    return V(S0 + t * 8 + tp * 4, 4)


def preg(t):
    return V(S0 + t * 8, 4)


def abuf(k):
    return V(AB0 + 4 * (k % 3), 4)


X_SRD, W_SRD, K_SRD, V_SRD, O_SRD = S(4, 4), S(8, 4), S(12, 4), S(16, 4), S(20, 4)
P_SRD, OUT_SRD, D_SRD, PR_SRD = S(24, 4), S(28, 4), S(32, 4), S(36, 4)
sPTR = 40
sX, sKQ, sB, sNT, sG, sW, sW8, sT0 = S(56), S(57), S(58), S(59), S(60), S(61), S(62), S(63)
sC, sNC, sTHR, sCNT, sFLAG, sTMP, sTMP2 = S(64), S(65), S(66), S(67), S(68), S(69), S(70)
sWB = S(71)
sA = [S(72 + i) for i in range(12)]
STAMP0 = 84


def stamp(p, k, force=False):
    if PROF and P1PROF and not force:
        return
    if PROF:
        p.raw(f's_memtime s[{STAMP0 + 2 * k}:{STAMP0 + 1 + 2 * k}]', 'smem')


_cst = [0]
P1PROF = 0


def cstamp(p, k, it):
    if not PROF:
        return
    _cst[0] += 1
    lab = f'cst{_cst[0]}'
    p.scmp('s_cmp_eq_u32', sCNT, it)
    p.branch('s_cbranch_scc0', lab)
    stamp(p, k, True)
    p.label(lab)


def stamp_flush(p, n):
    if not PROF:
        return
    p.waitcnt(vm=0, lgkm=0)
    p.salu('s_lshl_b32', sTMP, S(2), 3)
    p.salu('s_add_u32', sTMP, sTMP, sW8)
    p.salu('s_lshl_b32', sTMP, sTMP, 6)
    p.salu('s_add_u32', sTMP, sTMP, PROF_BASE)
    build_srd(p, PR_SRD, S(54), S(55), sTMP, 64)
    p.valu('v_mov_b32', T[1], 0)
    for k in range(n):
        p.valu('v_mov_b32', T[2], S(STAMP0 + 2 * k))
        p.bstore(T[2], T[1], PR_SRD, 0, off=4 * k)


def build_srd(p, srd, base_lo, base_hi, off_lo, nrec):
    n = srd[1]
    p.salu('s_add_u32', S(n), base_lo, off_lo)
    p.salu('s_addc_u32', S(n + 1), base_hi, 0)
    p.salu('s_and_b32', S(n + 1), S(n + 1), 0xffff)
    p.salu('s_mov_b32', S(n + 2), nrec)
    p.salu('s_mov_b32', S(n + 3), 0x20000)


def pack_pair(p, dst, a, b, scale=None):
    d = dst[1]
    if scale is not None:
        for k in range(4):
            p.valu('v_mul_f32', V(a[1] + k), V(a[1] + k), scale)
            p.valu('v_mul_f32', V(b[1] + k), V(b[1] + k), scale)
    p.valu('v_cvt_pk_bf16_f32', V(d), V(a[1]), V(a[1] + 1))
    p.valu('v_cvt_pk_bf16_f32', V(d + 1), V(a[1] + 2), V(a[1] + 3))
    p.valu('v_cvt_pk_bf16_f32', V(d + 2), V(b[1]), V(b[1] + 1))
    p.valu('v_cvt_pk_bf16_f32', V(d + 3), V(b[1] + 2), V(b[1] + 3))
    p.valu('v_permlane16_swap_b32', V(d), V(d + 2))
    p.valu('v_permlane16_swap_b32', V(d + 1), V(d + 3))


def xlane_reduce(p, op, x, t1):
    p.valu('v_mov_b32', t1, x)
    p.valu('v_permlane32_swap_b32', x, t1)
    p.valu(op, x, x, t1)
    p.valu('v_mov_b32', t1, x)
    p.valu('v_permlane16_swap_b32', x, t1)
    p.valu(op, x, x, t1)


def kvf():
    return 'nt' if KVNT else ''


def zero_acc(p, nt):
    for j in range(8):
        for t in range(nt):
            for r in range(4):
                p.valu('v_mov_b32', V(acc(j, t)[1] + r), 0)


def kv_off_static(c):
    return (c & 3) * 2 * STEP


def signal_and_wait(p, inc, shift, lab):
    p.waitcnt(vm=0)
    p.barrier()
    p.scmp('s_cmp_lg_u32', sW8, 0)
    p.branch('s_cbranch_scc1', f'{lab}_join')
    p.salu('s_mov_b64', S(sA[10][1], 2), 'exec')
    p.salu('s_mov_b64', 'exec', 1)
    p.valu('v_mov_b32', T[2], inc)
    p.raw(f'buffer_atomic_add v{T[2][1]}, v{T[3][1]}, s[32:35], 0 offen sc1', 'store', (),
          {('v', T[2][1]), ('v', T[3][1])})
    p.salu('s_mov_b32', sTMP2, 0)
    p.label(f'{lab}_spin')
    p.raw(f'buffer_load_dword v{T[2][1]}, v{T[4][1]}, s[32:35], 0 offen sc1', 'vmem', {('v', T[2][1])},
          {('v', T[4][1])})
    p.waitcnt(vm=0)
    p.valu('v_readfirstlane_b32', sTMP, T[2])
    p.salu('s_lshr_b32', sTMP, sTMP, shift)
    p.salu('s_and_b32', sTMP, sTMP, 0xffff)
    p.scmp('s_cmp_ge_u32', sTMP, 4)
    p.branch('s_cbranch_scc1', f'{lab}_done')
    p.raw('s_sleep 2')
    p.salu('s_add_u32', sTMP2, sTMP2, 1)
    p.scmp('s_cmp_lt_u32', sTMP2, SPIN_MAX)
    p.branch('s_cbranch_scc1', f'{lab}_spin')
    p.label(f'{lab}_done')
    p.salu('s_mov_b64', 'exec', S(sA[10][1], 2))
    p.raw('buffer_inv sc1')
    p.waitcnt(vm=0)
    p.label(f'{lab}_join')
    p.barrier()


def attn_loop(p, nt, sfx, grp, kvdma, sKVB):
    sKOFF, sOFF, sM0B, sDEL = sA[0:4]
    p.label(f'chunk_top{sfx}')
    if P1PROF == 2:
        cstamp(p, 0, 8)
        cstamp(p, 7, 9)
    if grp == 0:
        p.waitcnt(vm=8)
        if P1PROF == 2:
            cstamp(p, 1, 8)
        p.barrier()
        if P1PROF == 2:
            cstamp(p, 2, 8)
    p.label(f'qk_start{sfx}')
    kfr = [(tp, s) for tp in range(2) for s in range(4)]

    def kissue(k):
        tp, s = kfr[k]
        p.ds_read('ds_read_b128', abuf(k), vKRD, tp * L.K_T + s * L.K_S)
    for k in range(3):
        kissue(k)
    for k, (tp, s) in enumerate(kfr):
        p.waitcnt(lgkm=min(7 - k, 2))
        for t in range(nt):
            p.mfma(sreg(t, tp), abuf(k), qf(t, s), 0 if s == 0 else sreg(t, tp))
        if k + 3 < 8:
            kissue(k + 3)
    if P1PROF == 2:
        cstamp(p, 3, 8)
    p.scmp('s_cmp_eq_u32', sFLAG, 1)
    p.branch('s_cbranch_scc1', f'rescale{sfx}')
    if grp == 1:
        p.waitcnt(vm=4)
        if P1PROF == 2:
            cstamp(p, 1, 8)
        p.barrier()
        if P1PROF == 2:
            cstamp(p, 2, 8)
        p.scmp('s_cmp_eq_u32', sFLAG, 3)
        p.branch('s_cbranch_scc1', f'rescale{sfx}')
    p.label(f'softmax{sfx}')
    p.nop(5)
    for tp in range(2):
        for t in range(nt):
            if PK & 1:
                for r in (0, 2):
                    x = V(sreg(t, tp)[1] + r, 2)
                    hi = t & 1
                    p.valu('v_pk_fma_f32', x, x, S(100, 2), V(NEGM0 + (t & ~1), 2),
                           mods=f'op_sel:[0,0,{hi}] op_sel_hi:[1,0,{hi}]')
            else:
                for r in range(4):
                    x = V(sreg(t, tp)[1] + r)
                    p.valu('v_fma_f32', x, x, sC, V(NEGM0 + t))
            for r in range(4):
                x = V(sreg(t, tp)[1] + r)
                p.valu('v_exp_f32', x, x)
    for t in range(nt):
        b = S0 + t * 8
        if PK & 2:
            tp2 = V(AB0 + 8, 2)
            p.valu('v_pk_add_f32', tp2, V(b, 2), V(b + 2, 2))
            p.valu('v_pk_add_f32', tp2, tp2, V(b + 4, 2))
            p.valu('v_pk_add_f32', tp2, tp2, V(b + 6, 2))
            p.valu('v_add_f32', T[t], V(AB0 + 8), V(AB0 + 9))
            continue
        p.valu('v_add_f32', T[t], V(b), V(b + 1))
        p.valu('v_add_f32', T[4], V(b + 2), V(b + 3))
        p.valu('v_add_f32', T[t], T[t], V(b + 4))
        p.valu('v_add_f32', T[4], T[4], V(b + 5))
        p.valu('v_add_f32', T[t], T[t], V(b + 6))
        p.valu('v_add_f32', T[4], T[4], V(b + 7))
        p.valu('v_add_f32', T[t], T[t], T[4])
    p.valu('v_max3_f32', T[4], T[0], T[1], T[2])
    if nt == 4:
        p.valu('v_max_f32', T[4], T[4], T[3])
    p.valu('v_cmp_nge_f32', 'vcc', sTHR, T[4])
    p.branch('s_cbranch_vccnz', f'redo{sfx}')
    p.label(f'cont{sfx}')
    p.salu('s_mov_b32', sFLAG, 0)
    if P1PROF == 2:
        cstamp(p, 4, 8)

    def vissue(k):
        b = abuf(k)
        p.ds_read('ds_read_b64_tr_b16', V(b[1], 2), vVRD, TILE + 32 * k)
        p.ds_read('ds_read_b64_tr_b16', V(b[1] + 2, 2), vVRD, TILE + 32 * k + L.V_RD2)
    for k in range(3):
        vissue(k)
    for t in range(nt):
        p.valu('v_add_f32', V(L0 + t), V(L0 + t), T[t])
        b = S0 + t * 8
        for k in range(4):
            p.valu('v_cvt_pk_bf16_f32', V(b + k), V(b + 2 * k), V(b + 2 * k + 1))
    if P1PROF == 2:
        cstamp(p, 5, 8)
    p.salu('s_add_u32', sTMP, sCNT, 3)
    p.salu('s_and_b32', sTMP, sTMP, 3)
    p.salu('s_mul_i32', sM0B, sTMP, 2 * STEP)
    p.salu('s_add_u32', sM0B, sM0B, sKVB)
    p.salu('s_add_u32', sCNT, sCNT, 1)
    p.salu('s_and_b32', sTMP, sCNT, 3)
    p.salu('s_mul_i32', sTMP, sTMP, 2 * STEP)
    p.salu('s_sub_u32', sDEL, sTMP, sOFF)
    p.salu('s_mov_b32', sOFF, sTMP)
    for j in range(8):
        p.waitcnt(lgkm=2 * min(7 - j, 2))
        for t in range(nt):
            p.mfma(acc(j, t), abuf(j), preg(t), acc(j, t))
        if j + 3 < 8:
            vissue(j + 3)
        if j < 4:
            kvdma(sKOFF, 0, j, m0base=sM0B)
        if P1PROF == 2 and j == 3:
            cstamp(p, 6, 9)
    p.salu('s_add_u32', sKOFF, sKOFF, 8192)
    p.valu('v_add_u32', vKRD, sDEL, vKRD)
    p.valu('v_add_u32', vVRD, sDEL, vVRD)
    p.scmp('s_cmp_lt_u32', sCNT, 16)
    p.branch('s_cbranch_scc1', f'chunk_top{sfx}')


def tp_ops(p, nt, t, tp):
    b = S0 + t * 8 + 4 * tp
    ops = []
    for r in range(4):
        ops.append(lambda r=r: p.valu('v_fma_f32', V(b + r), V(b + r), sC, V(NEGM0 + t)))
    for r in range(4):
        ops.append(lambda r=r: p.valu('v_exp_f32', V(b + r), V(b + r)))
    if tp == 0:
        ops.append(lambda: p.valu('v_add_f32', T[t], V(b), V(b + 1)))
        ops.append(lambda: p.valu('v_add_f32', T[4], V(b + 2), V(b + 3)))
        ops.append(lambda: p.valu('v_add_f32', T[t], T[t], T[4]))
        ops.append(lambda: p.valu('v_cvt_pk_bf16_f32', V(b), V(b), V(b + 1)))
        ops.append(lambda: p.valu('v_cvt_pk_bf16_f32', V(b + 1), V(b + 2), V(b + 3)))
    else:
        ops.append(lambda: p.valu('v_add_f32', T[t], T[t], V(b)))
        ops.append(lambda: p.valu('v_add_f32', T[4], V(b + 1), V(b + 2)))
        ops.append(lambda: p.valu('v_add_f32', T[t], T[t], V(b + 3)))
        ops.append(lambda: p.valu('v_add_f32', T[t], T[t], T[4]))
    return ops


def qk_block(p, nt, interleave):
    kfr = [(tp, s) for tp in range(2) for s in range(4)]

    def kissue(k):
        tp, s = kfr[k]
        p.ds_read('ds_read_b128', abuf(k), vKRD, tp * L.K_T + s * L.K_S)
    pend = []
    if interleave:
        for t in range(nt):
            pend += tp_ops(p, nt, t, 0)
    per = -(-len(pend) // 4)
    for k in range(3):
        kissue(k)
    for k, (tp, s) in enumerate(kfr):
        p.waitcnt(lgkm=min(7 - k, 2))
        for t in range(nt):
            p.mfma(sreg(t, tp), abuf(k), qf(t, s), 0 if s == 0 else sreg(t, tp))
            if k >= 4 and pend:
                for _ in range(-(-per // nt)):
                    if pend:
                        pend.pop(0)()
        if k + 3 < 8:
            kissue(k + 3)
    for f in pend:
        f()


def attn_loop2(p, nt, sfx, kvdma, sKVB):
    sKOFF, sOFF, sM0B, sDEL = sA[0:4]
    p.label(f'chunk_top{sfx}')
    p.waitcnt(vm=8)
    p.barrier()
    p.scmp('s_cmp_lg_u32', sFLAG, 0)
    p.branch('s_cbranch_scc1', f'slow_qk{sfx}')
    qk_block(p, nt, True)
    p.label(f'tp1{sfx}')
    p.nop(3)
    for t in range(nt):
        for f in tp_ops(p, nt, t, 1):
            f()
    p.valu('v_max3_f32', T[4], T[0], T[1], T[2])
    if nt == 4:
        p.valu('v_max_f32', T[4], T[4], T[3])
    p.valu('v_cmp_nge_f32', 'vcc', sTHR, T[4])
    p.branch('s_cbranch_vccnz', f'redo{sfx}')
    p.label(f'cont{sfx}')
    p.salu('s_mov_b32', sFLAG, 0)

    def vissue(k):
        b = abuf(k)
        p.ds_read('ds_read_b64_tr_b16', V(b[1], 2), vVRD, TILE + 32 * k)
        p.ds_read('ds_read_b64_tr_b16', V(b[1] + 2, 2), vVRD, TILE + 32 * k + L.V_RD2)
    for k in range(3):
        vissue(k)
    for t in range(nt):
        b = S0 + t * 8
        p.valu('v_cvt_pk_bf16_f32', V(b + 2), V(b + 4), V(b + 5))
        p.valu('v_cvt_pk_bf16_f32', V(b + 3), V(b + 6), V(b + 7))
    for j in range(8):
        p.waitcnt(lgkm=2 * min(7 - j, 2))
        for t in range(nt):
            p.mfma(acc(j, t), abuf(j), preg(t), acc(j, t))
        if j + 3 < 8:
            vissue(j + 3)
        if j == 0:
            for t in range(nt):
                p.valu('v_add_f32', V(L0 + t), V(L0 + t), T[t])
            p.salu('s_add_u32', sTMP, sCNT, 3)
            p.salu('s_and_b32', sTMP, sTMP, 3)
            p.salu('s_mul_i32', sM0B, sTMP, 2 * STEP)
            p.salu('s_add_u32', sM0B, sM0B, sKVB)
            p.salu('s_add_u32', sCNT, sCNT, 1)
            p.salu('s_and_b32', sTMP, sCNT, 3)
            p.salu('s_mul_i32', sTMP, sTMP, 2 * STEP)
            p.salu('s_sub_u32', sDEL, sTMP, sOFF)
            p.salu('s_mov_b32', sOFF, sTMP)
        if 1 <= j <= 4:
            kvdma(sKOFF, 0, j - 1, m0base=sM0B)
        if j == 5:
            p.salu('s_add_u32', sKOFF, sKOFF, 8192)
            p.valu('v_add_u32', vKRD, sDEL, vKRD)
            p.valu('v_add_u32', vVRD, sDEL, vVRD)
    p.scmp('s_cmp_lt_u32', sCNT, 16)
    p.branch('s_cbranch_scc1', f'chunk_top{sfx}')


def attn_ool2(p, nt, sfx):
    p.label(f'redo{sfx}')
    p.scmp('s_cmp_eq_u32', sFLAG, 2)
    p.branch('s_cbranch_scc1', f'cont{sfx}')
    p.label(f'slow_qk{sfx}')
    qk_block(p, nt, False)
    p.nop(7)
    for t in range(nt):
        b = S0 + t * 8
        p.valu('v_max3_f32', T[0], V(b), V(b + 1), V(b + 2))
        p.valu('v_max3_f32', T[1], V(b + 3), V(b + 4), V(b + 5))
        p.valu('v_max3_f32', T[0], T[0], V(b + 6), V(b + 7))
        p.valu('v_max_f32', T[0], T[0], T[1])
        xlane_reduce(p, 'v_max_f32', T[0], T[1])
        p.valu('v_mul_f32', T[0], sNC, T[0])
        p.valu('v_min_f32', T[0], V(NEGM0 + t), T[0])
        p.valu('v_sub_f32', T[1], T[0], V(NEGM0 + t))
        p.valu('v_exp_f32', T[1], T[1])
        p.valu('v_mov_b32', V(NEGM0 + t), T[0])
        p.valu('v_mul_f32', V(L0 + t), V(L0 + t), T[1])
        for j in range(8):
            for r in range(4):
                a_ = V(acc(j, t)[1] + r)
                p.valu('v_mul_f32', a_, a_, T[1])
    for t in range(nt):
        for f in tp_ops(p, nt, t, 0):
            f()
    p.salu('s_mov_b32', sFLAG, 2)
    p.branch('s_branch', f'tp1{sfx}')


def attn_ool(p, nt, sfx):
    p.label(f'redo{sfx}')
    p.scmp('s_cmp_eq_u32', sFLAG, 2)
    p.branch('s_cbranch_scc1', f'cont{sfx}')
    p.salu('s_mov_b32', sFLAG, 1)
    p.branch('s_branch', f'qk_start{sfx}')

    p.label(f'rescale{sfx}')
    p.nop(7)
    for t in range(nt):
        b = S0 + t * 8
        p.valu('v_max3_f32', T[0], V(b), V(b + 1), V(b + 2))
        p.valu('v_max3_f32', T[1], V(b + 3), V(b + 4), V(b + 5))
        p.valu('v_max3_f32', T[0], T[0], V(b + 6), V(b + 7))
        p.valu('v_max_f32', T[0], T[0], T[1])
        xlane_reduce(p, 'v_max_f32', T[0], T[1])
        p.valu('v_mul_f32', T[0], sNC, T[0])
        p.valu('v_min_f32', T[0], V(NEGM0 + t), T[0])
        p.valu('v_sub_f32', T[1], T[0], V(NEGM0 + t))
        p.valu('v_exp_f32', T[1], T[1])
        p.valu('v_mov_b32', V(NEGM0 + t), T[0])
        p.valu('v_mul_f32', V(L0 + t), V(L0 + t), T[1])
        for j in range(8):
            for r in range(4):
                a = V(acc(j, t)[1] + r)
                p.valu('v_mul_f32', a, a, T[1])
    p.salu('s_mov_b32', sFLAG, 2)
    p.branch('s_branch', f'softmax{sfx}')


def body(p, nt, sfx):
    sRG, sKS, sKW, sKX, sWD, sXD, sX1, sX2, sKVB, sWDB, sR4 = sA[0:11]

    def xreg(n, t):
        return V(32 + (n % 2) * 16 + t * 4, 4)

    def kvdma(chunk_off_sgpr, lds_off, q, m0base=None):
        base, voff, srd, off = [(0, vKD, K_SRD, 0), (L.BLK2_K - 256, vKD, K_SRD, 256),
                                (TILE, vVD, V_SRD, 0), (TILE + L.BLK2_T - 256, vVD, V_SRD, 256)][q]
        p.salu('s_add_u32', 'm0', sKVB if m0base is None else m0base, lds_off + base)
        p.dma(voff, srd, chunk_off_sgpr, off=off, flags=kvf())

    def kv_static(c):
        p.salu('s_mov_b32', sTMP2, c * 8192)
        for q in range(4):
            kvdma(sTMP2, kv_off_static(c), q)

    def wdma(e, slot_sgpr_or_int, kw):
        if isinstance(slot_sgpr_or_int, int):
            p.salu('s_add_u32', 'm0', sWDB, slot_sgpr_or_int + e * L.BLK2_T)
        else:
            p.salu('s_add_u32', 'm0', slot_sgpr_or_int, e * L.BLK2_T)
        if e == 0:
            p.dma(vWD, W_SRD, kw)
        else:
            p.salu('s_add_u32', sTMP, kw, 8192)
            p.dma(vWD, W_SRD, sTMP)

    def xdma(e, slot, kx):
        tsg = (sX1, sX2)[e]
        p.salu('s_lshr_b32', sTMP, tsg, 4)
        p.salu('s_add_u32', 'm0', sTMP, slot)
        p.salu('s_add_u32', sTMP, tsg, kx)
        p.dma(vX, X_SRD, sTMP)

    stamp(p, 1)
    for st in range(3):
        if st:
            p.salu('s_add_u32', sKS, sKS, 1)
            p.salu('s_and_b32', sKS, sKS, 15)
        p.salu('s_lshl_b32', sKW, sKS, 18)
        p.salu('s_lshl_b32', sKX, sKS, 6)
        wdma(0, st * TILE, sKW)
        wdma(1, st * TILE, sKW)
        xdma(0, X_BASE + st * X_SLOT, sKX)
        xdma(1, X_BASE + st * X_SLOT, sKX)
    kv_static(0)
    zero_acc(p, nt)
    p.salu('s_mov_b32', sRG, 0)
    p.salu('s_mov_b32', sR4, 0)
    p.salu('s_mov_b32', sCNT, 0)
    p.waitcnt(vm=12)
    p.barrier()
    for t in range(nt):
        p.ds_read('ds_read_b128', xreg(0, t), vXB, t * 1024)
    for k in range(3):
        b = abuf4(k)
        p.ds_read('ds_read_b64_tr_b16', V(b[1], 2), vWB, 32 * k)
        p.ds_read('ds_read_b64_tr_b16', V(b[1] + 2, 2), vWB, 32 * k + L.W_RD2)
    p.valu('v_mov_b32', vWC, vWB)
    p.valu('v_add_u32', vXC, X_SLOT, vXB)
    stamp(p, 2)
    p.label(f'p1_loop{sfx}')
    for par in range(2):
        def book_a():
            p.salu('s_mul_i32', sXD, sRG, X_SLOT)
            p.salu('s_add_u32', sXD, sXD, X_BASE)
            p.salu('s_add_u32', sWD, sR4, 3 * TILE)
            p.scmp('s_cmp_ge_u32', sWD, 4 * TILE)
            p.salu('s_cselect_b32', sTMP, 4 * TILE, 0)
            p.salu('s_sub_u32', sWD, sWD, sTMP)
            p.salu('s_add_u32', sWD, sWD, sWDB)
            p.salu('s_add_u32', sR4, sR4, TILE)
            p.scmp('s_cmp_eq_u32', sR4, 4 * TILE)
            p.salu('s_cselect_b32', sR4, 0, sR4)
            p.valu('v_add_u32', vWN, sR4, vWB)
            p.salu('s_add_u32', sKS, sKS, 1)
            p.salu('s_and_b32', sKS, sKS, 15)
            p.salu('s_lshl_b32', sKW, sKS, 18)
            p.salu('s_lshl_b32', sKX, sKS, 6)

        def book_b():
            p.salu('s_add_u32', sRG, sRG, 1)
            p.scmp('s_cmp_eq_u32', sRG, 3)
            p.salu('s_cselect_b32', sRG, 0, sRG)
            p.salu('s_add_u32', sTMP, sRG, 1)
            p.scmp('s_cmp_eq_u32', sTMP, 3)
            p.salu('s_cselect_b32', sTMP, 0, sTMP)
            p.salu('s_mul_i32', sTMP, sTMP, X_SLOT)
            p.valu('v_add_u32', vXC, sTMP, vXB)
        if P1PROF == 1:
            cstamp(p, 0 if par == 0 else 7, 3)
        p.scmp('s_cmp_eq_u32', sCNT, 0)
        p.branch('s_cbranch_scc1', f'p1_w{par}{sfx}')
        p.waitcnt(vm=4)
        p.label(f'p1_w{par}{sfx}')
        p.waitcnt(vm=8)
        if P1PROF == 1 and par == 0:
            cstamp(p, 1, 3)
        p.barrier()
        if P1PROF == 1 and par == 0:
            cstamp(p, 2, 3)
        extra = {0: book_a, 1: lambda: wdma(0, sWD, sKW), 2: lambda: wdma(1, sWD, sKW),
                 4: lambda: xdma(0, sXD, sKX), 5: lambda: xdma(1, sXD, sKX), 6: book_b}
        for j in range(8):
            p.waitcnt(lgkm=4 + (nt if j in (1, 2, 3) else 0))
            if P1PROF == 1 and par == 0 and j in (1, 3, 4, 6):
                cstamp(p, {1: 3, 3: 4, 4: 5, 6: 6}[j], 3)
            for t in range(nt):
                p.mfma(acc(j, t), abuf4(j), xreg(par, t), acc(j, t))
            b = abuf4(j + 3)
            base = vWC if j + 3 < 8 else vWN
            kk = (j + 3) % 8
            p.ds_read('ds_read_b64_tr_b16', V(b[1], 2), base, 32 * kk)
            p.ds_read('ds_read_b64_tr_b16', V(b[1] + 2, 2), base, 32 * kk + L.W_RD2)
            if j == 0:
                for t in range(nt):
                    p.ds_read('ds_read_b128', xreg(par + 1, t), vXC, t * 1024)
            if j in extra:
                extra[j]()
        p.valu('v_mov_b32', vWC, vWN)
    p.salu('s_add_u32', sCNT, sCNT, 1)
    p.scmp('s_cmp_lt_u32', sCNT, 8)
    p.branch('s_cbranch_scc1', f'p1_loop{sfx}')
    p.waitcnt(lgkm=0)
    stamp(p, 3)
    for t in range(nt):
        for s in range(4):
            pack_pair(p, qf(t, s), acc(2 * s, t), acc(2 * s + 1, t))
    sKOFF, sOFF, sM0B, sDEL = sA[0:4]
    ec = ECompiler(p, {'l': V(0), 'gb': sTMP2}, T[:])
    p.salu('s_mul_i32', sTMP2, sG, STEP)
    ec.emit(L.K_RD + var('gb'), vKRD)
    ec.emit(L.V_RD + var('gb'), vVRD)
    for t in range(nt):
        p.valu('v_mov_b32', V(NEGM0 + t), 0x7f800000)
        p.valu('v_mov_b32', V(L0 + t), 0)
    p.salu('s_mov_b32', sCNT, 0)
    p.salu('s_mov_b32', sFLAG, 1)
    p.salu('s_mov_b32', sKOFF, 3 * 8192)
    p.salu('s_mov_b32', sOFF, 0)
    p.waitcnt(vm=0)
    p.barrier()
    kv_static(1)
    kv_static(2)

    if STAGGER:
        p.scmp('s_cmp_eq_u32', sG, 0)
        p.branch('s_cbranch_scc0', f'p2_g1{sfx}')
        attn_loop(p, nt, sfx + 'a', 0, kvdma, sKVB)
        p.branch('s_branch', f'p2_done{sfx}')
        p.label(f'p2_g1{sfx}')
        p.salu('s_mov_b32', sFLAG, 3)
        attn_loop(p, nt, sfx + 'b', 1, kvdma, sKVB)
        p.label(f'p2_done{sfx}')
    elif ILV:
        attn_loop2(p, nt, sfx + 'a', kvdma, sKVB)
    else:
        attn_loop(p, nt, sfx + 'a', 0, kvdma, sKVB)
    stamp(p, 4)

    osc = 'sc1' if STAGE >= 2 else 'nt'
    p.valu('v_lshlrev_b32', T[0], 4, V(0))
    p.salu('s_lshl_b32', sTMP, sT0, 12)
    p.valu('v_add_u32', T[0], sTMP, T[0])
    for t in range(nt):
        xlane_reduce(p, 'v_add_f32', V(L0 + t), T[1])
        p.valu('v_rcp_f32', V(L0 + t), V(L0 + t))
    for t in range(nt):
        p.salu('s_mov_b32', sTMP, t * 4096)
        for s in range(4):
            d = qf(t, s)
            pack_pair(p, d, acc(2 * s, t), acc(2 * s + 1, t), scale=V(L0 + t))
            p.bstore(d, T[0], O_SRD, sTMP, off=s * 1024, flags=osc)
    if STAGE == 1 and WOPF:
        p.salu('s_lshl_b32', sTMP, sKQ, 20)
        build_srd(p, W_SRD, S(48), S(49), sTMP, 1 << 20)
        p.salu('s_lshr_b32', sTMP, S(2), 3)
        p.salu('s_lshl_b32', sTMP, sTMP, 3)
        p.salu('s_add_u32', sTMP, sTMP, sW8)
        p.salu('s_lshl_b32', sTMP, sTMP, 12)
        p.valu('v_lshlrev_b32', T[1], 4, V(0))
        for e in range(4):
            p.bload(V(128 + 4 * e, 4), T[1], W_SRD, sTMP, off=e * 1024)
    if STAGE == 1:
        stamp(p, 5)
        stamp_flush(p, 8)
        p.raw('s_endpgm')
    else:
        phase3(p, nt, sfx)

    if ILV and not STAGGER:
        attn_ool2(p, nt, sfx + 'a')
    else:
        attn_ool(p, nt, sfx + 'a')
    if STAGGER:
        attn_ool(p, nt, sfx + 'b')


def poll_wait(p, shift, target, lab):
    p.scmp('s_cmp_lg_u32', sW8, 0)
    p.branch('s_cbranch_scc1', f'{lab}_join')
    p.salu('s_mov_b32', sTMP2, 0)
    p.label(f'{lab}_spin')
    p.raw(f'buffer_load_dword v{T[2][1]}, v{T[4][1]}, s[32:35], 0 offen sc1', 'vmem', {('v', T[2][1])},
          {('v', T[4][1])})
    p.waitcnt(vm=0)
    p.valu('v_readfirstlane_b32', sTMP, T[2])
    p.salu('s_lshr_b32', sTMP, sTMP, shift)
    p.salu('s_and_b32', sTMP, sTMP, 0xffff)
    p.scmp('s_cmp_ge_u32', sTMP, target)
    p.branch('s_cbranch_scc1', f'{lab}_done')
    p.raw('s_sleep 1')
    p.salu('s_add_u32', sTMP2, sTMP2, 1)
    p.scmp('s_cmp_lt_u32', sTMP2, SPIN_MAX)
    p.branch('s_cbranch_scc1', f'{lab}_spin')
    p.label(f'{lab}_done')
    p.raw('buffer_inv sc1')
    p.waitcnt(vm=0)
    p.label(f'{lab}_join')


def phase3(p, nt, sfx):
    sKB, sKWo, sSW, sWDB, sSB, sR4, sWD = sA[0:7]
    v3B, v3C, v3N = V(12), V(13), V(14)

    def a4(k):
        return V(16 + 4 * (k % 4), 4)

    def breg(n, t):
        return V(32 + ((n - 4) % 3) * 16 + t * 4, 4)

    def head_off(sig, dst):
        p.salu('s_lshr_b32', dst, sig, 2)
        p.salu('s_add_u32', dst, dst, sNT)
        p.salu('s_and_b32', dst, dst, 3)
        p.salu('s_lshl_b32', dst, dst, 1)
        p.salu('s_add_u32', dst, dst, sG)

    def adv_w():
        head_off(sSW, sKWo)
        p.salu('s_lshl_b32', sKWo, sKWo, 2)
        p.salu('s_and_b32', sTMP, sSW, 3)
        p.salu('s_add_u32', sKWo, sKWo, sTMP)
        p.salu('s_lshl_b32', sKWo, sKWo, 15)
        p.salu('s_add_u32', sSW, sSW, 1)

    def adv_b():
        head_off(sSB, sKB)
        p.salu('s_mul_i32', sKB, sKB, O_UNIT)
        p.salu('s_and_b32', sTMP, sSB, 3)
        p.salu('s_lshl_b32', sTMP, sTMP, 10)
        p.salu('s_add_u32', sKB, sKB, sTMP)
        p.salu('s_add_u32', sSB, sSB, 1)

    def bload1(step, t):
        if t == 0:
            p.bload(breg(step, t), vX, X_SRD, sKB, flags='sc1')
        else:
            p.salu('s_add_u32', sTMP, sKB, 4096 * t)
            p.bload(breg(step, t), vX, X_SRD, sTMP, flags='sc1')

    def wdma1(dest, e):
        if isinstance(dest, int):
            p.salu('s_add_u32', 'm0', sWDB, dest + e * L.BLK2_T - e * 1024)
        else:
            p.salu('s_add_u32', 'm0', dest, e * L.BLK2_T - e * 1024)
        p.dma(vWD, W_SRD, sKWo, off=e * 1024)

    p.salu('s_lshl_b32', sTMP, sX, 3)
    p.salu('s_add_u32', sTMP, sTMP, sB)
    p.salu('s_lshl_b32', sTMP2, sTMP, 2)
    p.salu('s_add_u32', sSW, sTMP2, sKQ)
    p.salu('s_lshl_b32', sSW, sSW, 2)
    p.valu('v_mov_b32', T[4], sSW)
    p.salu('s_lshl_b32', sTMP, sTMP, 5)
    p.salu('s_lshl_b32', sTMP2, sKQ, 3)
    p.salu('s_add_u32', sTMP, sTMP, sTMP2)
    p.salu('s_mul_i32', sTMP, sTMP, O_UNIT)
    build_srd(p, X_SRD, S(54), S(55), sTMP, 8 * O_UNIT)
    p.salu('s_lshl_b32', sTMP, sKQ, 20)
    p.salu('s_lshl_b32', sTMP2, sNT, 8)
    p.salu('s_add_u32', sTMP, sTMP, sTMP2)
    p.salu('s_sub_u32', sTMP2, 1 << 20, sTMP2)
    build_srd(p, W_SRD, S(48), S(49), sTMP, sTMP2)
    p.salu('s_mul_i32', sTMP2, sG, 4 * TILE)
    p.salu('s_add_u32', sWDB, sWB, sTMP2)
    ec = ECompiler(p, {'l': V(0), 'w': sW, 't0': sT0, 'gb': sTMP2}, [T[0], T[1], T[2], V(13), V(14)])
    l = var('l')
    ec.emit(L.W_RD + var('gb'), v3B)
    ec.emit(L.WO_ROW * 1024 + (l & 15) * 16, vWD)
    ec.emit((var('t0') << 12) + l * 16, vX)
    p.barrier()
    p.salu('s_mov_b32', sSW, 0)
    p.salu('s_mov_b32', sSB, 4)
    for st in range(3):
        adv_w()
        wdma1(st * TILE, 0)
        wdma1(st * TILE, 1)
    zero_acc(p, nt)
    p.valu('v_mov_b32', T[3], 1)

    def gstep(s, bsrc, static, extra):
        for j in range(8):
            p.waitcnt(lgkm=4)
            for t in range(nt):
                p.mfma(acc(j, t), a4(j), bsrc(t), acc(j, t))
            k = j + 3
            bb = a4(k)
            if static:
                off = ((s if k < 8 else s + 1) % 4) * TILE + 32 * (k % 8)
                base = v3B
            else:
                off = 32 * (k % 8)
                base = v3C if k < 8 else v3N
            p.ds_read('ds_read_b64_tr_b16', V(bb[1], 2), base, off)
            p.ds_read('ds_read_b64_tr_b16', V(bb[1] + 2, 2), base, off + L.W_RD2)
            for f in extra.get(j, []):
                f()

    def signal():
        p.salu('s_mov_b64', S(sA[8][1], 2), 'exec')
        p.salu('s_mov_b64', 'exec', 1)
        p.raw(f'buffer_atomic_add v{T[3][1]}, v{T[4][1]}, s[32:35], 0 offen sc1', 'store', (),
              {('v', T[3][1]), ('v', T[4][1])})
        p.salu('s_mov_b64', 'exec', S(sA[8][1], 2))

    p.waitcnt(vm=4)
    p.barrier()
    for k in range(3):
        bb = a4(k)
        p.ds_read('ds_read_b64_tr_b16', V(bb[1], 2), v3B, 32 * k)
        p.ds_read('ds_read_b64_tr_b16', V(bb[1] + 2, 2), v3B, 32 * k + L.W_RD2)
    signal()
    for s in range(4):
        if s == 0:
            p.waitcnt(vm=3)
        elif s == 1:
            p.waitcnt(vm=3)
        elif s == 2:
            p.waitcnt(vm=2)
            poll_wait(p, 0, 32, f'sy1{sfx}')
        else:
            p.waitcnt(vm=2 + nt)
        p.barrier()
        extra = {0: [adv_w], 1: [lambda s=s: wdma1(((s + 3) % 4) * TILE, 0)],
                 2: [lambda s=s: wdma1(((s + 3) % 4) * TILE, 1)]}
        if s >= 2:
            extra[0].append(adv_b)
            for t in range(nt):
                extra.setdefault(3 + t, []).append(lambda t=t, s=s: bload1(s + 2, t))
        gstep(s, lambda t, s=s: qf(t, s), True, extra)
    stamp(p, 5)
    p.salu('s_mov_b32', sCNT, 0)
    p.salu('s_mov_b32', sR4, 0)
    p.valu('v_mov_b32', v3C, v3B)
    p.label(f'p3_loop{sfx}')
    for u in range(3):
        s = 4 + u
        p.waitcnt(vm=2 + nt)
        p.barrier()

        def book():
            p.salu('s_add_u32', sWD, sR4, 3 * TILE)
            p.scmp('s_cmp_ge_u32', sWD, 4 * TILE)
            p.salu('s_cselect_b32', sTMP, 4 * TILE, 0)
            p.salu('s_sub_u32', sWD, sWD, sTMP)
            p.salu('s_add_u32', sWD, sWD, sWDB)
            p.salu('s_add_u32', sR4, sR4, TILE)
            p.scmp('s_cmp_eq_u32', sR4, 4 * TILE)
            p.salu('s_cselect_b32', sR4, 0, sR4)
            p.valu('v_add_u32', v3N, sR4, v3B)
        extra = {0: [book, adv_w, adv_b], 1: [lambda: wdma1(sWD, 0)], 2: [lambda: wdma1(sWD, 1)]}
        for t in range(nt):
            extra.setdefault(3 + t, []).append(lambda t=t, s=s: bload1(s + 2, t))
        gstep(s, lambda t, s=s: breg(s, t), False, extra)
        p.valu('v_mov_b32', v3C, v3N)
    p.salu('s_add_u32', sCNT, sCNT, 1)
    p.scmp('s_cmp_lt_u32', sCNT, 4)
    p.branch('s_cbranch_scc1', f'p3_loop{sfx}')
    stamp(p, 6)
    p.waitcnt(vm=0, lgkm=0)
    p.barrier()
    p.valu('v_lshlrev_b32', T[0], 4, V(0))
    p.salu('s_lshl_b32', sTMP, sT0, 13)
    p.valu('v_add_u32', T[0], sTMP, T[0])
    p.scmp('s_cmp_eq_u32', sG, 0)
    p.branch('s_cbranch_scc1', f'p3_g0{sfx}')
    for t in range(nt):
        for j in range(8):
            p.ds_write('ds_write_b128', T[0], acc(j, t), t * 8192 + j * 1024)
    p.waitcnt(lgkm=0)
    p.barrier()
    if STAGE >= 3:
        p.barrier()
        p.barrier()
    stamp(p, 7)
    stamp_flush(p, 8)
    p.raw('s_endpgm')
    p.label(f'p3_g0{sfx}')
    p.barrier()
    for t in range(nt):
        for j in range(8):
            p.ds_read('ds_read_b128', V(64 + (j + 8 * (t % 2)) * 4, 4), T[0], t * 8192 + j * 1024)
        p.waitcnt(lgkm=0)
        for j in range(8):
            for r in range(4):
                a = V(acc(j, t)[1] + r)
                p.valu('v_add_f32', a, a, V(64 + (j + 8 * (t % 2)) * 4 + r))
        if STAGE == 2:
            for jh in range(2):
                p.salu('s_mov_b32', sTMP, t * 8192 + jh * 4096)
                for jj in range(4):
                    p.bstore(acc(jh * 4 + jj, t), T[0], P_SRD, sTMP, off=jj * 1024, flags='nt' if K2X & 256 else '')
        else:
            for jh in range(2):
                p.salu('s_mov_b32', sTMP, t * 8192 + jh * 4096)
                for jj in range(4):
                    p.bstore(acc(jh * 4 + jj, t), T[0], P_SRD, sTMP, off=jj * 1024, flags='sc1')
    if STAGE == 2:
        stamp(p, 7)
        stamp_flush(p, 8)
        p.raw('s_endpgm')
        return
    p.salu('s_lshl_b32', sTMP, sX, 3)
    p.salu('s_add_u32', sTMP, sTMP, sB)
    p.salu('s_lshl_b32', sTMP, sTMP, 2)
    p.salu('s_add_u32', sTMP, sTMP, sNT)
    p.salu('s_lshl_b32', sTMP2, sTMP, 2)
    p.valu('v_mov_b32', T[3], sTMP2)
    p.valu('v_mov_b32', T[4], sTMP2)
    p.salu('s_mul_i32', sTMP, sTMP, PART_UNIT)
    p.salu('s_add_u32', sTMP, sTMP, PART_BASE)
    build_srd(p, X_SRD, S(54), S(55), sTMP, 193 * PART_UNIT)
    signal_and_wait(p, 0x10000, 16, f'sy2{sfx}')
    p.salu('s_lshl_b32', sKB, sKQ, 11)
    for t in range(nt):
        for src in range(4):
            p.salu('s_add_u32', sTMP, sKB, src * 64 * PART_UNIT + t * 8192)
            for jj in range(2):
                p.bload(V(64 + ((t * 4 + src) * 2 + jj) * 4, 4), T[0], X_SRD, sTMP, off=jj * 1024, flags='sc1')
    p.salu('s_mul_i32', sTMP, sB, 208)
    p.salu('s_lshl_b32', sTMP2, sT0, 4)
    p.salu('s_add_u32', sTMP, sTMP, sTMP2)
    p.salu('s_lshl_b32', sTMP, sTMP, 11)
    p.salu('s_lshl_b32', sTMP2, sX, 10)
    p.salu('s_add_u32', sTMP, sTMP, sTMP2)
    p.salu('s_lshl_b32', sTMP2, sNT, 8)
    p.salu('s_add_u32', sTMP, sTMP, sTMP2)
    p.salu('s_lshl_b32', sTMP2, sKQ, 6)
    p.salu('s_add_u32', sTMP, sTMP, sTMP2)
    ec = ECompiler(p, {'l': V(0), 'base': sTMP}, [T[1], T[2], V(12), V(13)])
    ec.emit(var('base') + (l & 15) * 2048 + L.sig(l >> 4) * 16, V(14))
    for t in range(nt):
        p.waitcnt(vm=(nt - 1 - t) * 8 + t)
        base = 64 + t * 32
        for k in range(8):
            p.valu('v_add_f32', V(base + k), V(base + k), V(base + 8 + k))
            p.valu('v_add_f32', V(base + 16 + k), V(base + 16 + k), V(base + 24 + k))
        for k in range(8):
            p.valu('v_add_f32', V(base + k), V(base + k), V(base + 16 + k))
        pack_pair(p, V(20 + 4 * (t % 3), 4), V(base, 4), V(base + 4, 4))
        p.salu('s_mov_b32', sTMP2, t * 32768)
        p.bstore(V(20 + 4 * (t % 3), 4), V(14), OUT_SRD, sTMP2)
    stamp(p, 7)
    stamp_flush(p, 8)
    p.raw('s_endpgm')


def gen_main():
    p = Prog()
    p.scmp('s_cmp_ge_u32', S(2), 256)
    p.branch('s_cbranch_scc1', 'k_end')
    stamp(p, 0)
    p.salu('s_and_b32', sTMP, S(2), 7)
    p.salu('s_lshr_b32', sTMP2, S(2), 3)
    p.salu('s_lshr_b32', sX, sTMP, 2)
    p.salu('s_and_b32', sKQ, sTMP, 3)
    p.salu('s_lshr_b32', sB, sTMP2, 2)
    p.salu('s_and_b32', sNT, sTMP2, 3)
    p.salu('s_mul_i32', sTMP, sX, 40)
    p.salu('s_add_u32', S(72), S(0), sTMP)
    p.salu('s_addc_u32', S(73), S(1), 0)
    p.sload('s_load_dwordx8', S(40, 8), S(72, 2), 0)
    p.sload('s_load_dwordx2', S(48, 2), S(72, 2), 32)
    p.sload('s_load_dwordx4', S(50, 4) if False else S(52, 4), S(0, 2), 88)
    p.sload('s_load_dwordx2', S(50, 2), S(0, 2), 80)
    p.valu('v_lshrrev_b32', T[0], 6, V(0))
    p.valu('v_readfirstlane_b32', sW8, T[0])
    p.valu('v_and_b32', V(0), 63, V(0))
    p.salu('s_lshr_b32', sG, sW8, 2)
    p.salu('s_and_b32', sW, sW8, 3)
    p.salu('s_mul_i32', sWB, sW, L.WBASE)
    p.salu('s_mul_i32', sT0, sW, 3)
    p.scmp('s_cmp_gt_u32', sW, sG)
    p.salu('s_addc_u32', sT0, sT0, 0)
    p.salu('s_mov_b32', sC, f32bits(SCALE_C))
    p.salu('s_mov_b32', S(100), f32bits(SCALE_C))
    p.salu('s_mov_b32', S(101), f32bits(SCALE_C))
    p.salu('s_mov_b32', sNC, f32bits(-SCALE_C))
    p.salu('s_mov_b32', sTHR, f32bits(4096.0))
    sRG, sKS, sKW, sKX, sWD, sXD, sX1, sX2, sKVB, sWDB = sA[0:10]
    p.salu('s_mul_i32', sTMP2, sG, W_RING)
    ec = ECompiler(p, {'l': V(0), 'w': sW, 't0': sT0, 'gw': sTMP2}, T[:])
    l = var('l')
    ec.emit(L.W_RD + var('gw') + P1_BASE, vWB)
    ec.emit(L.K_ROW * 256 + (l & 15) * 16, vKD)
    ec.emit(L.V_ROW * 256 + (l & 15) * 16, vVD)
    ec.emit(L.W_ROW * 8192 + (l & 15) * 16, vWD)
    xr = l >> 2
    ec.emit(xr * 1024 + (((l & 3) ^ ((4 - (xr >> 2)) & 3)) << 4), vX)
    xi = l & 15
    ec.emit((var('t0') << 10) + xi * 64 + (((l >> 4) ^ ((4 - (xi >> 2)) & 3)) << 4) + X_BASE, vXB)
    p.waitcnt(lgkm=0)
    p.salu('s_add_u32', sWDB, sWB, sTMP2)
    p.salu('s_add_u32', sWDB, sWDB, P1_BASE)
    p.salu('s_mul_i32', sKVB, sG, STEP)
    p.salu('s_add_u32', sKVB, sKVB, sWB)
    p.salu('s_lshl_b32', sX1, sW8, 14)
    p.salu('s_add_u32', sX2, sW8, 8)
    p.scmp('s_cmp_ge_u32', sX2, 13)
    p.salu('s_cselect_b32', sTMP, 13, 0)
    p.salu('s_sub_u32', sX2, sX2, sTMP)
    p.salu('s_lshl_b32', sX2, sX2, 14)
    p.salu('s_lshr_b32', sKS, S(2), 2)
    p.salu('s_and_b32', sKS, sKS, 14)
    p.salu('s_lshl_b32', sTMP, sKQ, 3)
    p.salu('s_lshl_b32', sTMP2, sNT, 1)
    p.salu('s_add_u32', sTMP, sTMP, sTMP2)
    p.salu('s_add_u32', sRG, sTMP, sG)
    p.salu('s_mul_i32', sTMP, sB, 212992)
    build_srd(p, X_SRD, S(40), S(41), sTMP, 212992)
    p.salu('s_lshl_b32', sTMP, sB, 5)
    p.salu('s_add_u32', sTMP, sTMP, sRG)
    p.salu('s_lshl_b32', sTMP2, sTMP, 17)
    build_srd(p, K_SRD, S(42), S(43), sTMP2, 131072)
    build_srd(p, V_SRD, S(44), S(45), sTMP2, 131072)
    p.salu('s_lshl_b32', sTMP2, sX, 8)
    p.salu('s_add_u32', sTMP, sTMP, sTMP2)
    p.salu('s_mul_i32', sTMP, sTMP, O_UNIT)
    build_srd(p, O_SRD, S(54), S(55), sTMP, O_UNIT)
    p.salu('s_lshl_b32', sTMP, sRG, 8)
    p.salu('s_sub_u32', sTMP2, 512 * 8192, sTMP)
    build_srd(p, W_SRD, S(46), S(47), sTMP, sTMP2)
    p.salu('s_lshl_b32', sTMP, sKQ, 4)
    p.salu('s_lshl_b32', sTMP2, sX, 3)
    p.salu('s_add_u32', sTMP, sTMP, sTMP2)
    p.salu('s_add_u32', sTMP, sTMP, sB)
    p.salu('s_lshl_b32', sTMP, sTMP, 2)
    p.salu('s_add_u32', sTMP, sTMP, sNT)
    p.salu('s_mul_i32', sTMP, sTMP, PART_UNIT)
    p.salu('s_add_u32', sTMP, sTMP, PART_BASE)
    build_srd(p, P_SRD, S(54), S(55), sTMP, PART_UNIT)
    build_srd(p, OUT_SRD, S(50), S(51), 0, 8 * 208 * 1024 * 2)
    build_srd(p, D_SRD, S(52), S(53), 0, 256)
    p.scmp('s_cmp_eq_u32', sW, sG)
    p.branch('s_cbranch_scc0', 'k_nt3')
    body(p, 4, '_4')
    p.label('k_nt3')
    body(p, 3, '_3')
    p.label('k_end')
    p.raw('s_endpgm')
    p.pad_hazards()
    return p


def main(out):
    import gen
    gen.K2X = K2X
    L.verify()
    k = gen_main()
    txt = gen.HEADER
    txt += f"; @launch kernel=mha_kernel grid=(256,1,1) block=(512,1,1) lds={LDS_TOTAL}\n"
    if STAGE == 1:
        txt += f"; @launch kernel=oproj_kernel grid=(256,1,1) block=(512,1,1) lds={gen.LDS_K2}\n"
    if STAGE <= 2:
        txt += f"; @launch kernel=reduce_kernel grid=(832,1,1) block=(256,1,1) lds=0\n"
    txt += '.amdgcn_target "amdgcn-amd-amdhsa--gfx950"\n'
    txt += gen.kernel_text('mha_kernel', k, 256)
    if STAGE == 1:
        txt += gen.kernel_text('oproj_kernel', gen.gen_k2(), 256)
    if STAGE <= 2:
        txt += gen.kernel_text('reduce_kernel', gen.gen_k3(), 64)
    open(out, 'w').write(txt)
    print("wrote", out, len(txt))


if __name__ == '__main__':
    for a in sys.argv[2:]:
        if a == 'prof':
            PROF = True
        elif '=' in a:
            k_, v_ = a.split('=')
            globals()[k_] = int(v_)
    main(sys.argv[1])
```

```python
import math
import struct
import sys

from asmlib import Prog, V, S, E, var, ECompiler
import layout as L

NAME = 'concat_heads__mha_block_cached__mha_block_cached__near_ridge'
STEP = 2 * L.TILE
RING = 4
LDS_BYTES = RING * STEP
LDS_K1 = RING * STEP + 13312
O_UNIT = 13 * 4096
PART_BASE = 0x2000000
PART_UNIT = 13 * 8192


def f32bits(x):
    return struct.unpack('<I', struct.pack('<f', x))[0]


SCALE_C = (128 ** -0.5) * math.log2(math.e)
PROF = False
MAP = 0
NOCOMP = 0
NOMEM = 0
NOX = 0
STAG = 0
PRIO = 0
K2X = 0
P1PROF = 0
TWICE = 0
WARM = 1
ROT = 1
KVNT = 1
SKIP1 = 0
SKIP2 = 0
PROF_BASE = 0x8000000
P_SRD = S(64, 4)


def stamp(p, k):
    if PROF:
        p.raw(f's_memtime s[{70 + 2 * k}:{71 + 2 * k}]', 'smem')


_cst = [0]


def cstamp(p, k, it=8):
    if not PROF:
        return
    if P1PROF and it >= 8:
        return
    _cst[0] += 1
    lab = f'cst{_cst[0]}'
    p.scmp('s_cmp_eq_u32', sCNT, it)
    p.branch('s_cbranch_scc0', lab)
    stamp(p, k)
    p.label(lab)


def stamp_flush(p, n, k2=False):
    if not PROF:
        return
    p.waitcnt(lgkm=0)
    p.salu('s_lshl_b32', S(68), S(2), 3 if k2 else 2)
    p.salu('s_add_u32', S(68), S(68), S(66) if k2 else sW)
    p.salu('s_lshl_b32', S(68), S(68), 6)
    p.salu('s_add_u32', S(68), S(68), PROF_BASE + (0x100000 if k2 else 0))
    build_srd(p, P_SRD, S(40), S(41), S(68), 64)
    p.valu('v_mov_b32', T[1], 0)
    for k in range(n):
        p.valu('v_mov_b32', T[2], S(70 + 2 * k))
        p.bstore(T[2], T[1], P_SRD, 0, off=4 * k)
    p.raw('s_getreg_b32 s69, hwreg(HW_REG_HW_ID)', 'salu', {('s', 69)})
    p.valu('v_mov_b32', T[2], S(69))
    p.bstore(T[2], T[1], P_SRD, 0, off=60)

ACC0 = 128
QF0 = 64
S0 = 32
AB0 = 20
NEGM0 = 16
L0 = 12
vKRD, vVRD, vKD, vVD = V(1), V(2), V(3), V(4)
vWD, vX = V(5), V(6)
vXRD = V(16)
T = [V(7), V(8), V(9), V(10), V(11)]


def acc(j, t):
    return V(ACC0 + (j * 4 + t) * 4, 4)


def qf(t, s):
    return V(QF0 + (t * 4 + s) * 4, 4)


def sreg(t, tp):
    return V(S0 + t * 8 + tp * 4, 4)


def preg(t):
    return V(S0 + t * 8, 4)


def abuf(k):
    return V(AB0 + 4 * (k % 3), 4)


def xbuf(n, tau, t):
    return V(32 + (n % 3) * 32 + (tau * 4 + t) * 4, 4)


X_SRD, W_SRD, K_SRD, V_SRD, O_SRD = S(4, 4), S(8, 4), S(12, 4), S(16, 4), S(20, 4)
sW, sWB = S(24), S(25)
sC, sTHR, sCNT, sM0B, sKOFF, sFLAG = S(42), S(43), S(44), S(45), S(46), S(47)
sXT = [0, S(48), S(49), S(50)]
sDELTA, sTMP, sRING, sNC = S(51), S(52), S(53), S(54)


def build_srd(p, srd, base_lo, base_hi, off_lo, nrec):
    n = srd[1]
    p.salu('s_add_u32', S(n), base_lo, off_lo)
    p.salu('s_addc_u32', S(n + 1), base_hi, 0)
    p.salu('s_and_b32', S(n + 1), S(n + 1), 0xffff)
    p.salu('s_mov_b32', S(n + 2), nrec)
    p.salu('s_mov_b32', S(n + 3), 0x20000)


def gemm_step(p, nt, slot_off, xb, first, rd_addr):
    if NOCOMP:
        return
    frags = [(tau, j) for tau in range(2) for j in range(8)]

    def issue(k):
        tau, j = frags[k]
        b = abuf(k)
        off = slot_off + tau * L.TILE + 32 * j
        p.ds_read('ds_read_b64_tr_b16', V(b[1], 2), rd_addr, off)
        p.ds_read('ds_read_b64_tr_b16', V(b[1] + 2, 2), rd_addr, off + L.W_RD2)
    for k in range(3):
        issue(k)
    for k, (tau, j) in enumerate(frags):
        rem = min(len(frags) - 1 - k, 2)
        p.waitcnt(lgkm=2 * rem)
        for t in range(nt):
            c = 0 if (first and tau == 0) else acc(j, t)
            p.mfma(acc(j, t), abuf(k), xb(tau, t), c)
        if k + 3 < len(frags):
            issue(k + 3)


def pack_pair(p, dst, a, b, scale=None):
    d = dst[1]
    if scale is not None:
        for k in range(4):
            p.valu('v_mul_f32', V(a[1] + k), V(a[1] + k), scale)
            p.valu('v_mul_f32', V(b[1] + k), V(b[1] + k), scale)
    p.valu('v_cvt_pk_bf16_f32', V(d), V(a[1]), V(a[1] + 1))
    p.valu('v_cvt_pk_bf16_f32', V(d + 1), V(a[1] + 2), V(a[1] + 3))
    p.valu('v_cvt_pk_bf16_f32', V(d + 2), V(b[1]), V(b[1] + 1))
    p.valu('v_cvt_pk_bf16_f32', V(d + 3), V(b[1] + 2), V(b[1] + 3))
    p.valu('v_permlane16_swap_b32', V(d), V(d + 2))
    p.valu('v_permlane16_swap_b32', V(d + 1), V(d + 3))


def xlane_reduce(p, op, x, t1):
    p.valu('v_mov_b32', t1, x)
    p.valu('v_permlane32_swap_b32', x, t1)
    p.valu(op, x, x, t1)
    p.valu('v_mov_b32', t1, x)
    p.valu('v_permlane16_swap_b32', x, t1)
    p.valu(op, x, x, t1)


def kvf():
    return {0: '', 1: 'nt', 2: 'sc1 nt', 3: 'sc0 sc1 nt', 4: 'sc1', 5: 'sc0 sc1'}[KVNT]


def dma_kv_static(p, chunk, step):
    so = (step % RING) * STEP
    p.salu('s_mov_b32', sTMP, chunk * 8192)
    p.salu('s_add_u32', 'm0', sWB, so)
    p.dma(vKD, K_SRD, sTMP, tag=('D', step), flags=kvf())
    p.salu('s_add_u32', 'm0', sWB, so + L.BLK2_K - 256)
    p.dma(vKD, K_SRD, sTMP, off=256, tag=('D', step), flags=kvf())
    p.salu('s_add_u32', 'm0', sWB, so + L.TILE)
    p.dma(vVD, V_SRD, sTMP, tag=('D', step), flags=kvf())
    p.salu('s_add_u32', 'm0', sWB, so + L.TILE + L.BLK2_T - 256)
    p.dma(vVD, V_SRD, sTMP, off=256, tag=('D', step), flags=kvf())


def dma_w_static(p, step, pitch, srd, voff, rot=None):
    so = (step % RING) * STEP
    if rot is not None:
        p.salu('s_add_u32', S(63), rot, step)
        p.salu('s_and_b32', S(63), S(63), 7)
        p.salu('s_mul_i32', S(63), S(63), 64 * pitch)
    for tau in range(2):
        for e in range(2):
            p.salu('s_add_u32', 'm0', sWB, so + tau * L.TILE + e * L.BLK2_T)
            if rot is None:
                p.salu('s_mov_b32', sTMP, (64 * step + 32 * tau + e) * pitch)
            else:
                p.salu('s_add_u32', sTMP, S(63), (32 * tau + e) * pitch)
            p.dma(voff, srd, sTMP, tag=('D', step))


def k1_body(p, nt, sfx):
    p.vm_queue = []
    p.nomem = NOMEM
    p.nox = NOX

    NS = 16
    WT = [STEP, STEP + L.TILE, 3 * STEP, 3 * STEP + L.TILE]
    XS = [RING * STEP, 2 * STEP]
    XBASE = 2 * STEP

    def xreg(n, t):
        return V(32 + (n % 2) * 16 + t * 4, 4)

    sKS = S(63)
    sKW, sKX = S(64), S(65)

    def adv_k():
        p.salu('s_add_u32', sKS, sKS, 1)
        p.salu('s_and_b32', sKS, sKS, 15)
        p.salu('s_lshl_b32', sKW, sKS, 18)
        p.salu('s_lshl_b32', sKX, sKS, 6)

    def xdma1(step, t):
        p.salu('s_add_u32', 'm0', S(60), XS[step % 2] + t * 1024)
        if t == 0:
            p.dma(vX, X_SRD, sKX, tag=('X', step))
        else:
            p.salu('s_add_u32', sTMP, sKX, 16384 * t)
            p.dma(vX, X_SRD, sTMP, tag=('X', step))

    def wdma1(step, e):
        p.salu('s_add_u32', 'm0', sWB, WT[step % 4] + e * L.BLK2_T)
        if e == 0:
            p.dma(vWD, W_SRD, sKW, tag=('W', step))
        else:
            p.salu('s_add_u32', sTMP, sKW, 8192)
            p.dma(vWD, W_SRD, sTMP, tag=('W', step))

    def xread(step):
        for t in range(nt):
            p.ds_read('ds_read_b128', xreg(step, t), vXRD, XS[step % 2] - XBASE + t * 1024)

    def kvdma1(chunk, q):
        so = (chunk % RING) * STEP
        if q == 0:
            p.salu('s_mov_b32', S(66), chunk * 8192)
        base, voff, srd, off = [(so, vKD, K_SRD, 0), (so + L.BLK2_K - 256, vKD, K_SRD, 256),
                                (so + L.TILE, vVD, V_SRD, 0), (so + L.TILE + L.BLK2_T - 256, vVD, V_SRD, 256)][q]
        p.salu('s_add_u32', 'm0', sWB, base)
        p.dma(voff, srd, S(66), off=off, tag=('D', chunk), flags=kvf())

    def p1_step(s, looped):
        pp = P1PROF and looped and s == 1
        if pp:
            cstamp(p, 6, 1)
        if P1PROF and looped and s == 2:
            cstamp(p, 13, 1)
        if looped:
            p.waitcnt(vm=2 + nt)
        else:
            p.vm_wait_for({('W', s), ('X', s + 1)})
        if pp:
            cstamp(p, 7, 1)
        p.barrier()
        if pp:
            cstamp(p, 8, 1)

        def issue(k):
            b = abuf(k)
            off = WT[s % 4] + 32 * k
            p.ds_read('ds_read_b64_tr_b16', V(b[1], 2), vKRD, off)
            p.ds_read('ds_read_b64_tr_b16', V(b[1] + 2, 2), vKRD, off + L.W_RD2)
        for k in range(3):
            issue(k)
        nx = 0
        if s + 1 < NS:
            xread(s + 1)
            nx = nt
        extra = {j: [] for j in range(8)}
        if s + 3 < NS:
            extra[0].append(adv_k)
            extra[1].append(lambda: wdma1(s + 3, 0))
            extra[2].append(lambda: wdma1(s + 3, 1))
            for t in range(nt):
                extra[3 + t].append(lambda t=t: xdma1(s + 3, t))
        if s in (14, 15):
            for q in range(4):
                extra[1 + q].append(lambda q=q: kvdma1(s - 13, q))
        for j in range(8):
            younger = 2 * min(7 - j, 2) + (nx if j < 3 else 0)
            p.waitcnt(lgkm=younger)
            if pp and j in (0, 1, 3, 7):
                cstamp(p, {0: 9, 1: 10, 3: 11, 7: 12}[j], 1)
            for t in range(nt):
                p.mfma(acc(j, t), abuf(j), xreg(s, t), acc(j, t))
            if j + 3 < 8:
                issue(j + 3)
            for f in extra[j]:
                f()

    stamp(p, 1)
    for q in range(4):
        kvdma1(0, q)
    if STAG:
        p.scmp('s_cmp_lt_u32', S(2), 256)
        p.branch('s_cbranch_scc1', f'nostag{sfx}')
        for _ in range(STAG):
            p.raw('s_sleep 16')
        p.label(f'nostag{sfx}')
    if PRIO:
        p.scmp('s_cmp_ge_u32', S(2), 256)
        p.branch('s_cbranch_scc1', f'noprio{sfx}')
        p.raw('s_setprio 3')
        p.label(f'noprio{sfx}')
    p.salu('s_and_b32', sKS, S(59), 15)
    p.salu('s_lshl_b32', sKW, sKS, 18)
    p.salu('s_lshl_b32', sKX, sKS, 6)
    for st in range(3):
        if st:
            adv_k()
        wdma1(st, 0)
        wdma1(st, 1)
        if st == 2:
            p.vm_wait_for({('X', 0)})
            xread(0)
            p.waitcnt(lgkm=0)
        for t in range(nt):
            xdma1(st, t)
        if st == 0:
            for j in range(8):
                for t in range(nt):
                    for r in range(4):
                        p.valu('v_mov_b32', V(acc(j, t)[1] + r), 0)
    stamp(p, 2)
    p.salu('s_mov_b32', sCNT, 0)
    p.label(f'p1_loop{sfx}')
    for s4 in range(4):
        p1_step(s4, True)
    p.salu('s_add_u32', sCNT, sCNT, 1)
    p.scmp('s_cmp_lt_u32', sCNT, 3)
    p.branch('s_cbranch_scc1', f'p1_loop{sfx}')
    p.vm_queue = [('W', 13)] * 2 + [('X', 13)] * nt + [('W', 14)] * 2 + [('X', 14)] * nt
    p.vm_queue = [('W', 12)] * 2 + [('X', 12)] * nt + p.vm_queue
    for s in range(12, 16):
        p1_step(s, False)
    stamp(p, 3)
    if PRIO:
        p.raw('s_setprio 0')
    for t in range(nt):
        for s in range(4):
            pack_pair(p, qf(t, s), acc(2 * s, t), acc(2 * s + 1, t))
    ec = ECompiler(p, {'l': V(0)}, T[:])
    ec.emit(L.K_RD, vKRD)
    for t in range(nt):
        p.valu('v_mov_b32', V(NEGM0 + t), 0x7f800000)
        p.valu('v_mov_b32', V(L0 + t), 0)
    p.salu('s_mov_b32', sCNT, 0)
    p.salu('s_mov_b32', S(62), STEP)
    p.salu('s_mov_b32', sFLAG, 1)
    p.salu('s_mov_b32', sKOFF, 3 * 8192)
    p.salu('s_mov_b32', sRING, 3 * STEP)
    assert len(p.vm_queue) == 8, p.vm_queue
    if SKIP2:
        p.branch('s_branch', f'epi{sfx}')

    p.label(f'chunk_top{sfx}')
    cstamp(p, 6)
    cstamp(p, 13, 9)
    p.waitcnt(vm=8)
    cstamp(p, 7)
    p.barrier()
    cstamp(p, 8)
    cstamp(p, 9)
    p.label(f'qk_start{sfx}')
    if NOCOMP:
        p.branch('s_branch', f'skipc{sfx}')
    kfr = [(tp, s) for tp in range(2) for s in range(4)]

    def kissue(k):
        tp, s = kfr[k]
        p.ds_read('ds_read_b128', abuf(k), vKRD, tp * L.K_T + s * L.K_S)
    for k in range(3):
        kissue(k)
    for k, (tp, s) in enumerate(kfr):
        p.waitcnt(lgkm=min(7 - k, 2))
        for t in range(nt):
            p.mfma(sreg(t, tp), abuf(k), qf(t, s), 0 if s == 0 else sreg(t, tp))
        if k + 3 < 8:
            kissue(k + 3)
    cstamp(p, 10)
    p.scmp('s_cmp_eq_u32', sFLAG, 1)
    p.branch('s_cbranch_scc1', f'rescale{sfx}')
    p.label(f'softmax{sfx}')
    p.nop(7)
    for tp in range(2):
        for t in range(nt):
            for r in range(4):
                x = V(sreg(t, tp)[1] + r)
                p.valu('v_fma_f32', x, x, sC, V(NEGM0 + t))
            for r in range(4):
                x = V(sreg(t, tp)[1] + r)
                p.valu('v_exp_f32', x, x)
    for t in range(nt):
        b = S0 + t * 8
        p.valu('v_add_f32', T[t], V(b), V(b + 1))
        p.valu('v_add_f32', T[4], V(b + 2), V(b + 3))
        p.valu('v_add_f32', T[t], T[t], V(b + 4))
        p.valu('v_add_f32', T[4], T[4], V(b + 5))
        p.valu('v_add_f32', T[t], T[t], V(b + 6))
        p.valu('v_add_f32', T[4], T[4], V(b + 7))
        p.valu('v_add_f32', T[t], T[t], T[4])
    p.valu('v_max3_f32', T[4], T[0], T[1], T[2])
    if nt == 4:
        p.valu('v_max_f32', T[4], T[4], T[3])
    p.valu('v_cmp_nge_f32', 'vcc', sTHR, T[4])
    p.branch('s_cbranch_vccnz', f'redo{sfx}')
    p.label(f'cont{sfx}')
    p.salu('s_mov_b32', sFLAG, 0)
    cstamp(p, 11)

    def vissue(k):
        b = abuf(k)
        p.ds_read('ds_read_b64_tr_b16', V(b[1], 2), vVRD, L.TILE + 32 * k)
        p.ds_read('ds_read_b64_tr_b16', V(b[1] + 2, 2), vVRD, L.TILE + 32 * k + L.V_RD2)
    for k in range(3):
        vissue(k)
    for t in range(nt):
        p.valu('v_add_f32', V(L0 + t), V(L0 + t), T[t])
        b = S0 + t * 8
        for k in range(4):
            p.valu('v_cvt_pk_bf16_f32', V(b + k), V(b + 2 * k), V(b + 2 * k + 1))
    cstamp(p, 12)
    for j in range(8):
        p.waitcnt(lgkm=2 * min(7 - j, 2))
        for t in range(nt):
            p.mfma(acc(j, t), abuf(j), preg(t), acc(j, t))
        if j + 3 < 8:
            vissue(j + 3)
        if j == 0:
            p.salu('s_add_u32', sM0B, sRING, sWB)
            p.salu('s_mov_b32', 'm0', sM0B)
            p.salu('s_add_u32', sRING, sRING, STEP)
            p.dma(vKD, K_SRD, sKOFF, flags=kvf())
        if j == 1:
            p.salu('s_add_u32', 'm0', sM0B, L.BLK2_K - 256)
            p.scmp('s_cmp_eq_u32', sRING, RING * STEP)
            p.salu('s_cselect_b32', sRING, 0, sRING)
            p.dma(vKD, K_SRD, sKOFF, off=256, flags=kvf())
        if j == 2:
            p.salu('s_add_u32', 'm0', sM0B, L.TILE)
            p.salu('s_and_b32', sTMP, sCNT, 3)
            p.dma(vVD, V_SRD, sKOFF, flags=kvf())
        if j == 3:
            p.salu('s_add_u32', 'm0', sM0B, L.TILE + L.BLK2_T - 256)
            p.scmp('s_cmp_eq_u32', sTMP, 3)
            p.salu('s_cselect_b32', sDELTA, -3 * STEP, S(62))
            p.dma(vVD, V_SRD, sKOFF, off=256, flags=kvf())
            p.salu('s_add_u32', sKOFF, sKOFF, 8192)
    p.label(f'skipc{sfx}')
    p.valu('v_add_u32', vKRD, sDELTA, vKRD)
    p.valu('v_add_u32', vVRD, sDELTA, vVRD)
    p.salu('s_add_u32', sCNT, sCNT, 1)
    p.scmp('s_cmp_lt_u32', sCNT, 16)
    p.branch('s_cbranch_scc1', f'chunk_top{sfx}')

    p.label(f'epi{sfx}')
    stamp(p, 4)
    p.valu('v_and_b32', T[0], 63, V(0))
    p.valu('v_lshlrev_b32', T[0], 4, T[0])
    p.valu('v_add_u32', T[0], S(26), T[0])
    for t in range(nt):
        xlane_reduce(p, 'v_add_f32', V(L0 + t), T[1])
        p.valu('v_rcp_f32', V(L0 + t), V(L0 + t))
    for t in range(nt):
        p.salu('s_mov_b32', sTMP, t * 4096)
        for s in range(4):
            d = qf(t, s)
            pack_pair(p, d, acc(2 * s, t), acc(2 * s + 1, t), scale=V(L0 + t))
            p.bstore(d, T[0], O_SRD, sTMP, off=s * 1024, flags='nt' if K2X & 128 else '')
    if PROF:
        p.waitcnt(vm=0)
    stamp(p, 5)
    if PROF:
        p.raw('s_memrealtime s[98:99]', 'smem')
        p.waitcnt(lgkm=0)
        p.salu('s_sub_u32', S(98), S(98), S(100))
    stamp_flush(p, 15)
    p.raw('s_endpgm')

    p.label(f'redo{sfx}')
    p.scmp('s_cmp_eq_u32', sFLAG, 2)
    p.branch('s_cbranch_scc1', f'cont{sfx}')
    p.salu('s_mov_b32', sFLAG, 1)
    p.branch('s_branch', f'qk_start{sfx}')

    p.label(f'rescale{sfx}')
    p.nop(7)
    for t in range(nt):
        b = S0 + t * 8
        p.valu('v_max3_f32', T[0], V(b), V(b + 1), V(b + 2))
        p.valu('v_max3_f32', T[1], V(b + 3), V(b + 4), V(b + 5))
        p.valu('v_max3_f32', T[0], T[0], V(b + 6), V(b + 7))
        p.valu('v_max_f32', T[0], T[0], T[1])
        xlane_reduce(p, 'v_max_f32', T[0], T[1])
        p.valu('v_mul_f32', T[0], sNC, T[0])
        p.valu('v_min_f32', T[0], V(NEGM0 + t), T[0])
        p.valu('v_sub_f32', T[1], T[0], V(NEGM0 + t))
        p.valu('v_exp_f32', T[1], T[1])
        p.valu('v_mov_b32', V(NEGM0 + t), T[0])
        p.valu('v_mul_f32', V(L0 + t), V(L0 + t), T[1])
        for j in range(8):
            for r in range(4):
                a = V(acc(j, t)[1] + r)
                p.valu('v_mul_f32', a, a, T[1])
    p.salu('s_mov_b32', sFLAG, 2)
    p.branch('s_branch', f'softmax{sfx}')


def wave_setup(p):
    p.valu('v_lshrrev_b32', T[0], 6, V(0))
    p.valu('v_readfirstlane_b32', sW, T[0])
    p.valu('v_and_b32', V(0), 63, V(0))
    p.salu('s_mul_i32', sWB, sW, L.WBASE)
    p.salu('s_mul_i32', S(27), sW, 3)
    p.salu('s_add_u32', S(27), S(27), 1)
    p.scmp('s_cmp_eq_u32', sW, 0)
    p.salu('s_cselect_b32', S(27), 0, S(27))
    p.salu('s_lshl_b32', S(26), S(27), 12)


def gen_k1():
    p = Prog()
    p.scmp('s_cmp_ge_u32', S(2), 512)
    p.branch('s_cbranch_scc1', 'k1_end')
    stamp(p, 0)
    if PROF:
        p.raw('s_memrealtime s[100:101]', 'smem')
    p.salu('s_and_b32', S(28), S(2), 7)
    p.salu('s_lshr_b32', S(29), S(2), 3)
    p.salu('s_lshr_b32', S(55), S(28), 2)
    if MAP == 0:
        p.salu('s_and_b32', S(56), S(28), 3)
        p.salu('s_lshl_b32', S(56), S(56), 3)
        p.salu('s_and_b32', S(57), S(29), 7)
        p.salu('s_add_u32', S(56), S(56), S(57))
        p.salu('s_lshr_b32', S(57), S(29), 3)
    else:
        p.salu('s_and_b32', S(56), S(29), 31)
        p.salu('s_and_b32', S(57), S(28), 3)
        p.salu('s_lshl_b32', S(57), S(57), 1)
        p.salu('s_lshr_b32', S(58), S(29), 5)
        p.salu('s_add_u32', S(57), S(57), S(58))
    p.salu('s_mul_i32', S(58), S(55), 40)
    p.salu('s_add_u32', S(30), S(0), S(58))
    p.salu('s_addc_u32', S(31), S(1), 0)
    p.sload('s_load_dwordx8', S(32, 8), S(30, 2), 0)
    p.sload('s_load_dwordx2', S(40, 2), S(0, 2), 96)
    wave_setup(p)
    p.salu('s_mov_b32', sC, f32bits(SCALE_C))
    p.salu('s_mov_b32', sNC, f32bits(-SCALE_C))
    p.salu('s_mov_b32', sTHR, f32bits(4096.0))
    p.salu('s_mov_b32', sXT[1], 16384)
    p.salu('s_mov_b32', sXT[2], 32768)
    p.salu('s_mov_b32', sXT[3], 49152)
    ec = ECompiler(p, {'l': V(0), 'w': sW, 't0': S(27)}, T[:])
    l = var('l')
    ec.emit(L.W_RD, vKRD)
    ec.emit(L.V_RD, vVRD)
    ec.emit(L.K_ROW * 256 + (l & 15) * 16, vKD)
    ec.emit(L.V_ROW * 256 + (l & 15) * 16, vVD)
    ec.emit(L.W_ROW * 8192 + (l & 15) * 16, vWD)
    xr = l >> 2
    ec.emit(((var('t0') << 4) + xr) * 1024 + (((l & 3) ^ ((4 - (xr >> 2)) & 3)) << 4), vX)
    xi = l & 15
    ec.emit((var('t0') << 10) + xi * 64 + (((l >> 4) ^ ((4 - (xi >> 2)) & 3)) << 4) + 2 * STEP, vXRD)
    p.waitcnt(lgkm=0)
    p.salu('s_mul_i32', S(58), S(57), 212992)
    build_srd(p, X_SRD, S(32), S(33), S(58), 212992)
    p.salu('s_lshl_b32', S(58), S(57), 5)
    p.salu('s_add_u32', S(58), S(58), S(56))
    p.salu('s_lshl_b32', S(59), S(58), 17)
    build_srd(p, K_SRD, S(34), S(35), S(59), 131072)
    build_srd(p, V_SRD, S(36), S(37), S(59), 131072)
    p.salu('s_lshl_b32', S(59), S(56), 8)
    p.salu('s_sub_u32', S(60), 512 * 8192, S(59))
    build_srd(p, W_SRD, S(38), S(39), S(59), S(60))
    p.salu('s_lshl_b32', S(59), S(55), 8)
    p.salu('s_add_u32', S(58), S(58), S(59))
    p.salu('s_mul_i32', S(58), S(58), O_UNIT)
    build_srd(p, O_SRD, S(40), S(41), S(58), O_UNIT)
    ec.emit((l >> 4) * 8192 + (l & 15) * 16, T[0] if False else V(12))
    ec.emit(l * 16, V(13))
    p.salu('s_lshl_b32', S(61), S(57), 2)
    p.salu('s_add_u32', S(61), S(61), sW)
    p.salu('s_lshl_b32', S(61), S(61), 17)
    p.salu('s_and_b32', S(62), S(56), 7)
    p.salu('s_mul_i32', S(62), S(62), 26)
    p.salu('s_add_u32', S(62), S(62), sW)
    p.salu('s_lshl_b32', S(62), S(62), 10)
    p.salu('s_lshl_b32', S(59), S(56), 1)
    p.salu('s_lshl_b32', S(60), S(27), 10)
    p.scmp('s_cmp_eq_u32', sW, 0)
    p.branch('s_cbranch_scc0', 'k1_nt3')
    k1_body(p, 4, '_4')
    p.label('k1_nt3')
    k1_body(p, 3, '_3')
    p.label('k1_end')
    p.raw('s_endpgm')
    p.pad_hazards()
    return p


K2_RED = 13 * 8192
LDS_K2 = K2_RED


def k2_body(p, nt, sfx):
    sKB, sKWo, sKAP = S(63), S(64), S(65)

    def breg(n, t):
        return V(64 + (n % 4) * 16 + t * 4, 4)

    def adv_k():
        p.salu('s_add_u32', sKAP, sKAP, 2)
        p.salu('s_lshr_b32', sKB, sKAP, 2)
        p.salu('s_mul_i32', sKB, sKB, O_UNIT)
        p.salu('s_and_b32', sTMP, sKAP, 3)
        p.salu('s_lshl_b32', sTMP, sTMP, 10)
        p.salu('s_add_u32', sKB, sKB, sTMP)
        p.salu('s_lshl_b32', sKWo, sKAP, 15)

    def bload1(step, t):
        fl = 'nt' if K2X & 32 else ''
        if t == 0:
            p.bload(breg(step, t), vX, X_SRD, sKB, flags=fl)
        else:
            p.salu('s_add_u32', sTMP, sKB, 4096 * t)
            p.bload(breg(step, t), vX, X_SRD, sTMP, flags=fl)

    def wdma1(step, e):
        p.salu('s_add_u32', 'm0', sWB, (step % 4) * L.TILE + e * L.BLK2_T - e * 1024)
        p.dma(vWD, W_SRD, sKWo, off=e * 1024, flags='nt' if K2X & 64 else '')

    p.salu('s_sub_u32', sKAP, S(61 + 6), 2)
    for st in range(3):
        adv_k()
        wdma1(st, 0)
        wdma1(st, 1)
        for t in range(nt):
            bload1(st, t)
        if st == 0:
            for j in range(8):
                for t in range(nt):
                    for r in range(4):
                        p.valu('v_mov_b32', V(acc(j, t)[1] + r), 0)
    p.salu('s_mov_b32', sCNT, 0)
    stamp(p, 1)

    def a4(k):
        return V(32 + 4 * (k % 4), 4)

    def issue(st, k):
        b = a4(k)
        off = (st % 4) * L.TILE + 32 * (k % 8)
        p.ds_read('ds_read_b64_tr_b16', V(b[1], 2), vKRD, off)
        p.ds_read('ds_read_b64_tr_b16', V(b[1] + 2, 2), vKRD, off + L.W_RD2)
    p.waitcnt(vm=nt + 2 * (2 + nt))
    p.barrier()
    for k in range(3):
        issue(0, k)
    p.label(f'k2_loop{sfx}')
    for s in range(4):
        p.waitcnt(vm=2 + 2 * nt)
        p.barrier()
        if s == 0:
            cstamp(p, 2, 0)
        extra = {j: [] for j in range(8)}
        extra[0].append(adv_k)
        extra[1].append(lambda: wdma1(s + 3, 0))
        extra[2].append(lambda: wdma1(s + 3, 1))
        for t in range(nt):
            extra[3 + t].append(lambda t=t: bload1(s + 3, t))
        for j in range(8):
            p.waitcnt(lgkm=4)
            for t in range(nt):
                p.mfma(acc(j, t), a4(j), breg(s, t), acc(j, t))
            issue(s if j + 3 < 8 else s + 1, j + 3)
            for f in extra[j]:
                f()
    p.salu('s_add_u32', sCNT, sCNT, 1)
    p.scmp('s_cmp_lt_u32', sCNT, 4)
    p.branch('s_cbranch_scc1', f'k2_loop{sfx}')
    stamp(p, 3)
    p.waitcnt(vm=0, lgkm=0)
    p.barrier()
    p.valu('v_lshlrev_b32', T[0], 4, V(0))
    p.salu('s_lshl_b32', S(26), S(27), 13)
    p.valu('v_add_u32', T[0], S(26), T[0])
    pfl = 'nt' if K2X & 256 else ''
    for grp in range(2):
        if grp == 0:
            p.scmp('s_cmp_eq_u32', S(67), 0)
            p.branch('s_cbranch_scc0', f'k2_g1{sfx}')
        else:
            p.label(f'k2_g1{sfx}')
        own = range(4 * grp, 4 * grp + 4)
        oth = range(4 * (1 - grp), 4 * (1 - grp) + 4)
        for t in range(nt):
            for j in oth:
                p.ds_write('ds_write_b128', T[0], acc(j, t), t * 8192 + j * 1024)
        p.waitcnt(lgkm=0)
        p.barrier()
        stamp(p, 4)
        for t in range(nt):
            for j in own:
                p.ds_read('ds_read_b128', V(64 + (t * 4 + j % 4) * 4, 4), T[0], t * 8192 + j * 1024)
        for t in range(nt):
            p.waitcnt(lgkm=(nt - 1 - t) * 4)
            for j in own:
                for r in range(4):
                    a_ = V(acc(j, t)[1] + r)
                    p.valu('v_add_f32', a_, a_, V(64 + (t * 4 + j % 4) * 4 + r))
            p.salu('s_mov_b32', sTMP, t * 8192 + grp * 4096)
            for j in own:
                p.bstore(acc(j, t), T[0], O_SRD, sTMP, off=(j % 4) * 1024, flags=pfl)
        if PROF:
            p.waitcnt(vm=0)
        stamp(p, 5)
        stamp_flush(p, 6, True)
        p.raw('s_endpgm')


def gen_k2():
    p = Prog()
    p.scmp('s_cmp_ge_u32', S(2), 256)
    p.branch('s_cbranch_scc1', 'k2_end')
    stamp(p, 0)
    p.salu('s_and_b32', S(28), S(2), 7)
    p.salu('s_lshr_b32', S(29), S(2), 3)
    p.salu('s_lshr_b32', S(55), S(28), 2)
    p.salu('s_and_b32', S(56), S(28), 3)
    p.salu('s_lshr_b32', S(57), S(29), 2)
    p.salu('s_and_b32', S(61), S(29), 3)
    if K2X & 8:
        p.salu('s_mov_b32', S(57), 0)
    if K2X & 16:
        p.salu('s_mov_b32', S(61), 0)
    p.salu('s_mul_i32', S(58), S(55), 40)
    p.salu('s_add_u32', S(30), S(0), S(58))
    p.salu('s_addc_u32', S(31), S(1), 0)
    p.sload('s_load_dwordx2', S(32, 2), S(30, 2), 32)
    p.sload('s_load_dwordx2', S(40, 2), S(0, 2), 96)
    p.valu('v_lshrrev_b32', T[0], 6, V(0))
    p.valu('v_readfirstlane_b32', S(66), T[0])
    p.valu('v_and_b32', V(0), 63, V(0))
    p.salu('s_lshr_b32', S(67), S(66), 2)
    p.salu('s_and_b32', sW, S(66), 3)
    p.salu('s_mul_i32', sWB, sW, L.WBASE)
    p.salu('s_mul_i32', S(68), S(67), 4 * L.TILE)
    p.salu('s_add_u32', sWB, sWB, S(68))
    p.salu('s_mul_i32', S(27), sW, 3)
    p.scmp('s_cmp_gt_u32', sW, S(67))
    p.salu('s_addc_u32', S(27), S(27), 0)
    ec = ECompiler(p, {'l': V(0), 'w': sW, 't0': S(27), 'gb': S(68)}, T[:])
    l = var('l')
    ec.emit(L.W_RD + var('gb'), vKRD)
    ec.emit(L.WO_ROW * 1024 + (l & 15) * 16, vWD)
    ec.emit((var('t0') << 12) + l * 16, vX)
    p.waitcnt(lgkm=0)
    p.salu('s_lshl_b32', S(58), S(55), 3)
    p.salu('s_add_u32', S(58), S(58), S(57))
    p.salu('s_lshl_b32', S(59), S(58), 5)
    p.salu('s_lshl_b32', S(60), S(56), 3)
    p.salu('s_add_u32', S(59), S(59), S(60))
    p.salu('s_mul_i32', S(59), S(59), O_UNIT)
    build_srd(p, X_SRD, S(40), S(41), S(59), 8 * O_UNIT)
    p.salu('s_lshl_b32', S(59), S(56), 20)
    p.salu('s_lshl_b32', S(60), S(61), 8)
    p.salu('s_add_u32', S(59), S(59), S(60))
    p.salu('s_sub_u32', S(60), 1 << 20, S(60))
    build_srd(p, W_SRD, S(32), S(33), S(59), S(60))
    p.salu('s_lshl_b32', S(59), S(56), 4)
    p.salu('s_add_u32', S(59), S(59), S(58))
    p.salu('s_lshl_b32', S(59), S(59), 2)
    p.salu('s_add_u32', S(59), S(59), S(61))
    p.salu('s_mul_i32', S(59), S(59), PART_UNIT)
    p.salu('s_add_u32', S(59), S(59), PART_BASE)
    build_srd(p, O_SRD, S(40), S(41), S(59), PART_UNIT)
    p.scmp('s_cmp_eq_u32', sW, S(67))
    p.branch('s_cbranch_scc0', 'k2_nt3')
    k2_body(p, 4, '_4')
    p.label('k2_nt3')
    k2_body(p, 3, '_3')
    p.label('k2_end')
    p.raw('s_endpgm')
    p.pad_hazards()
    return p


def gen_k3():
    p = Prog()
    p.scmp('s_cmp_ge_u32', S(2), 832)
    p.branch('s_cbranch_scc1', 'k3_end')
    p.sload('s_load_dwordx2', S(40, 2), S(0, 2), 96)
    p.sload('s_load_dwordx2', S(32, 2), S(0, 2), 80)
    p.salu('s_mul_hi_u32', S(28), S(2), 0x4EC4EC4F)
    p.salu('s_lshr_b32', S(28), S(28), 2)
    p.salu('s_mul_i32', S(29), S(28), 13)
    p.salu('s_sub_u32', S(29), S(2), S(29))
    p.valu('v_lshrrev_b32', T[0], 6, V(0))
    p.valu('v_readfirstlane_b32', sW, T[0])
    p.valu('v_and_b32', V(0), 63, V(0))
    p.salu('s_mul_i32', S(30), S(28), PART_UNIT)
    p.salu('s_lshl_b32', S(31), S(29), 13)
    p.salu('s_add_u32', S(30), S(30), S(31))
    p.salu('s_lshl_b32', S(31), sW, 11)
    p.salu('s_add_u32', S(30), S(30), S(31))
    p.valu('v_lshlrev_b32', V(1), 4, V(0))
    p.valu('v_add_u32', V(1), S(30), V(1))
    p.waitcnt(lgkm=0)
    build_srd(p, X_SRD, S(40), S(41), PART_BASE, 256 * PART_UNIT)
    build_srd(p, O_SRD, S(32), S(33), 0, 8 * 208 * 1024 * 2)
    for kq in range(4):
        p.salu('s_mov_b32', sTMP, kq * 64 * PART_UNIT)
        p.bload(V(32 + kq * 8, 4), V(1), X_SRD, sTMP, flags='nt' if K2X & 512 else '')
        p.bload(V(36 + kq * 8, 4), V(1), X_SRD, sTMP, off=1024, flags='nt' if K2X & 512 else '')
    p.salu('s_lshr_b32', S(55), S(28), 5)
    p.salu('s_lshr_b32', S(57), S(28), 2)
    p.salu('s_and_b32', S(57), S(57), 7)
    p.salu('s_and_b32', S(61), S(28), 3)
    p.salu('s_mul_i32', S(58), S(57), 208)
    p.salu('s_lshl_b32', S(59), S(29), 4)
    p.salu('s_add_u32', S(58), S(58), S(59))
    p.salu('s_lshl_b32', S(58), S(58), 11)
    p.salu('s_lshl_b32', S(59), S(55), 10)
    p.salu('s_add_u32', S(58), S(58), S(59))
    p.salu('s_lshl_b32', S(59), S(61), 8)
    p.salu('s_add_u32', S(58), S(58), S(59))
    p.salu('s_lshl_b32', S(59), sW, 6)
    p.salu('s_add_u32', S(58), S(58), S(59))
    ec = ECompiler(p, {'l': V(0), 'base': S(58)}, T[:])
    l = var('l')
    ec.emit(var('base') + (l & 15) * 2048 + L.sig(l >> 4) * 16, V(2))
    p.waitcnt(vm=0)
    for k in range(8):
        p.valu('v_add_f32', V(32 + k), V(32 + k), V(40 + k))
        p.valu('v_add_f32', V(48 + k), V(48 + k), V(56 + k))
    for k in range(8):
        p.valu('v_add_f32', V(32 + k), V(32 + k), V(48 + k))
    pack_pair(p, V(20, 4), V(32, 4), V(36, 4))
    p.bstore(V(20, 4), V(2), O_SRD, 0)
    p.label('k3_end')
    p.raw('s_endpgm')
    p.pad_hazards()
    return p


HEADER = open(f'cdna_kernels/{NAME}.s.ref').read().split('; Override launch geometry')[0]


def kernel_text(name, prog, vgprs, sgprs=102):
    return f""".text
.globl {name}
.p2align 8
.type {name},@function
{name}:
{prog.text()}
.section .rodata,"a"
.p2align 6
.amdhsa_kernel {name}
  .amdhsa_next_free_vgpr {vgprs}
  .amdhsa_next_free_sgpr {sgprs}
  .amdhsa_accum_offset {(vgprs + 3) // 4 * 4}
  .amdhsa_group_segment_fixed_size 0
  .amdhsa_kernarg_size 104
  .amdhsa_user_sgpr_count 2
  .amdhsa_user_sgpr_kernarg_segment_ptr 1
  .amdhsa_system_sgpr_workgroup_id_x 1
.end_amdhsa_kernel
"""


def main(out):
    L.verify()
    k1, k2, k3 = gen_k1(), gen_k2(), gen_k3()
    txt = HEADER
    txt += f"; @launch kernel=attn_kernel grid=(512,1,1) block=(256,1,1) lds={LDS_K1}\n"
    txt += f"; @launch kernel=oproj_kernel grid=(256,1,1) block=(512,1,1) lds={LDS_K2}\n"
    txt += f"; @launch kernel=reduce_kernel grid=(832,1,1) block=(256,1,1) lds=0\n"
    txt += '.amdgcn_target "amdgcn-amd-amdhsa--gfx950"\n'
    txt += kernel_text('attn_kernel', k1, 256)
    txt += kernel_text('oproj_kernel', k2, 256)
    txt += kernel_text('reduce_kernel', k3, 64)
    open(out, 'w').write(txt)
    print("wrote", out, len(txt))


if __name__ == '__main__':
    for a in sys.argv[2:]:
        if a == 'prof':
            PROF = True
        elif '=' in a:
            k, v = a.split('=')
            globals()[k] = int(v)
    main(sys.argv[1] if len(sys.argv) > 1 else f'cdna_kernels/{NAME}.s')
```

```python
import math
import struct
import sys

from asmlib import Prog, V, S, E, var, ECompiler
import layout as L

NAME = 'concat_heads__mha_block_cached__mha_block_cached__near_ridge'
TILE = L.TILE
STEP = 2 * TILE
O_UNIT = 13 * 4096
PART_BASE = 0x2000000
PART_UNIT = 13 * 8192
LDS_TOTAL = 163840
P1_BASE = 2 * STEP
W_RING = 4 * TILE
X_BASE = P1_BASE + 2 * W_RING
X_SLOT = 13312
assert X_BASE + 3 * X_SLOT <= LDS_TOTAL

STAGE = 1
PROF = False
PROF_BASE = 0x8000000
KVNT = 1
XBAL = 1
ILV = 1
PK = 0
WOPF = 0
STAGGER = 0
K2X = 544
SPIN_MAX = 200000


def f32bits(x):
    return struct.unpack('<I', struct.pack('<f', x))[0]


SCALE_C = (128 ** -0.5) * math.log2(math.e)

ACC0, QF0, S0, AB0, NEGM0, L0 = 128, 64, 32, 20, 16, 12
vKRD, vVRD, vKD, vVD = V(1), V(2), V(3), V(4)
vWD, vX = V(5), V(6)
T = [V(7), V(8), V(9), V(10), V(11)]
vWB, vXB, vWC, vXC, vWN = V(12), V(13), V(14), V(15), V(16)


def abuf4(k):
    return V(64 + 4 * (k % 4), 4)


def acc(j, t):
    return V(ACC0 + (j * 4 + t) * 4, 4)


def qf(t, s):
    return V(QF0 + (t * 4 + s) * 4, 4)


def sreg(t, tp):
    return V(S0 + t * 8 + tp * 4, 4)


def preg(t):
    return V(S0 + t * 8, 4)


def abuf(k):
    return V(AB0 + 4 * (k % 3), 4)


X_SRD, W_SRD, K_SRD, V_SRD, O_SRD = S(4, 4), S(8, 4), S(12, 4), S(16, 4), S(20, 4)
P_SRD, OUT_SRD, D_SRD, PR_SRD = S(24, 4), S(28, 4), S(32, 4), S(36, 4)
sPTR = 40
sX, sKQ, sB, sNT, sG, sW, sW8, sT0 = S(56), S(57), S(58), S(59), S(60), S(61), S(62), S(63)
sC, sNC, sTHR, sCNT, sFLAG, sTMP, sTMP2 = S(64), S(65), S(66), S(67), S(68), S(69), S(70)
sWB = S(71)
sA = [S(72 + i) for i in range(12)]
STAMP0 = 84


def stamp(p, k, force=False):
    if PROF and P1PROF and not force:
        return
    if PROF:
        p.raw(f's_memtime s[{STAMP0 + 2 * k}:{STAMP0 + 1 + 2 * k}]', 'smem')


_cst = [0]
P1PROF = 0


def cstamp(p, k, it):
    if not PROF:
        return
    _cst[0] += 1
    lab = f'cst{_cst[0]}'
    p.scmp('s_cmp_eq_u32', sCNT, it)
    p.branch('s_cbranch_scc0', lab)
    stamp(p, k, True)
    p.label(lab)


def stamp_flush(p, n):
    if not PROF:
        return
    p.waitcnt(vm=0, lgkm=0)
    p.salu('s_lshl_b32', sTMP, S(2), 3)
    p.salu('s_add_u32', sTMP, sTMP, sW8)
    p.salu('s_lshl_b32', sTMP, sTMP, 6)
    p.salu('s_add_u32', sTMP, sTMP, PROF_BASE)
    build_srd(p, PR_SRD, S(54), S(55), sTMP, 64)
    p.valu('v_mov_b32', T[1], 0)
    for k in range(n):
        p.valu('v_mov_b32', T[2], S(STAMP0 + 2 * k))
        p.bstore(T[2], T[1], PR_SRD, 0, off=4 * k)


def build_srd(p, srd, base_lo, base_hi, off_lo, nrec):
    n = srd[1]
    p.salu('s_add_u32', S(n), base_lo, off_lo)
    p.salu('s_addc_u32', S(n + 1), base_hi, 0)
    p.salu('s_and_b32', S(n + 1), S(n + 1), 0xffff)
    p.salu('s_mov_b32', S(n + 2), nrec)
    p.salu('s_mov_b32', S(n + 3), 0x20000)


def pack_pair(p, dst, a, b, scale=None):
    d = dst[1]
    if scale is not None:
        for k in range(4):
            p.valu('v_mul_f32', V(a[1] + k), V(a[1] + k), scale)
            p.valu('v_mul_f32', V(b[1] + k), V(b[1] + k), scale)
    p.valu('v_cvt_pk_bf16_f32', V(d), V(a[1]), V(a[1] + 1))
    p.valu('v_cvt_pk_bf16_f32', V(d + 1), V(a[1] + 2), V(a[1] + 3))
    p.valu('v_cvt_pk_bf16_f32', V(d + 2), V(b[1]), V(b[1] + 1))
    p.valu('v_cvt_pk_bf16_f32', V(d + 3), V(b[1] + 2), V(b[1] + 3))
    p.valu('v_permlane16_swap_b32', V(d), V(d + 2))
    p.valu('v_permlane16_swap_b32', V(d + 1), V(d + 3))


def xlane_reduce(p, op, x, t1):
    p.valu('v_mov_b32', t1, x)
    p.valu('v_permlane32_swap_b32', x, t1)
    p.valu(op, x, x, t1)
    p.valu('v_mov_b32', t1, x)
    p.valu('v_permlane16_swap_b32', x, t1)
    p.valu(op, x, x, t1)


def kvf():
    return 'nt' if KVNT else ''


def zero_acc(p, nt):
    for j in range(8):
        for t in range(nt):
            for r in range(4):
                p.valu('v_mov_b32', V(acc(j, t)[1] + r), 0)


def kv_off_static(c):
    return (c & 3) * 2 * STEP


def signal_and_wait(p, inc, shift, lab):
    p.waitcnt(vm=0)
    p.barrier()
    p.scmp('s_cmp_lg_u32', sW8, 0)
    p.branch('s_cbranch_scc1', f'{lab}_join')
    p.salu('s_mov_b64', S(sA[10][1], 2), 'exec')
    p.salu('s_mov_b64', 'exec', 1)
    p.valu('v_mov_b32', T[2], inc)
    p.raw(f'buffer_atomic_add v{T[2][1]}, v{T[3][1]}, s[32:35], 0 offen sc1', 'store', (),
          {('v', T[2][1]), ('v', T[3][1])})
    p.salu('s_mov_b32', sTMP2, 0)
    p.label(f'{lab}_spin')
    p.raw(f'buffer_load_dword v{T[2][1]}, v{T[4][1]}, s[32:35], 0 offen sc1', 'vmem', {('v', T[2][1])},
          {('v', T[4][1])})
    p.waitcnt(vm=0)
    p.valu('v_readfirstlane_b32', sTMP, T[2])
    p.salu('s_lshr_b32', sTMP, sTMP, shift)
    p.salu('s_and_b32', sTMP, sTMP, 0xffff)
    p.scmp('s_cmp_ge_u32', sTMP, 4)
    p.branch('s_cbranch_scc1', f'{lab}_done')
    p.raw('s_sleep 2')
    p.salu('s_add_u32', sTMP2, sTMP2, 1)
    p.scmp('s_cmp_lt_u32', sTMP2, SPIN_MAX)
    p.branch('s_cbranch_scc1', f'{lab}_spin')
    p.label(f'{lab}_done')
    p.salu('s_mov_b64', 'exec', S(sA[10][1], 2))
    p.raw('buffer_inv sc1')
    p.waitcnt(vm=0)
    p.label(f'{lab}_join')
    p.barrier()


def attn_loop(p, nt, sfx, grp, kvdma, sKVB):
    sKOFF, sOFF, sM0B, sDEL = sA[0:4]
    p.label(f'chunk_top{sfx}')
    if P1PROF == 2:
        cstamp(p, 0, 8)
        cstamp(p, 7, 9)
    if grp == 0:
        p.waitcnt(vm=8)
        if P1PROF == 2:
            cstamp(p, 1, 8)
        p.barrier()
        if P1PROF == 2:
            cstamp(p, 2, 8)
    p.label(f'qk_start{sfx}')
    kfr = [(tp, s) for tp in range(2) for s in range(4)]

    def kissue(k):
        tp, s = kfr[k]
        p.ds_read('ds_read_b128', abuf(k), vKRD, tp * L.K_T + s * L.K_S)
    for k in range(3):
        kissue(k)
    for k, (tp, s) in enumerate(kfr):
        p.waitcnt(lgkm=min(7 - k, 2))
        for t in range(nt):
            p.mfma(sreg(t, tp), abuf(k), qf(t, s), 0 if s == 0 else sreg(t, tp))
        if k + 3 < 8:
            kissue(k + 3)
    if P1PROF == 2:
        cstamp(p, 3, 8)
    p.scmp('s_cmp_eq_u32', sFLAG, 1)
    p.branch('s_cbranch_scc1', f'rescale{sfx}')
    if grp == 1:
        p.waitcnt(vm=4)
        if P1PROF == 2:
            cstamp(p, 1, 8)
        p.barrier()
        if P1PROF == 2:
            cstamp(p, 2, 8)
        p.scmp('s_cmp_eq_u32', sFLAG, 3)
        p.branch('s_cbranch_scc1', f'rescale{sfx}')
    p.label(f'softmax{sfx}')
    p.nop(5)
    for tp in range(2):
        for t in range(nt):
            if PK & 1:
                for r in (0, 2):
                    x = V(sreg(t, tp)[1] + r, 2)
                    hi = t & 1
                    p.valu('v_pk_fma_f32', x, x, S(100, 2), V(NEGM0 + (t & ~1), 2),
                           mods=f'op_sel:[0,0,{hi}] op_sel_hi:[1,0,{hi}]')
            else:
                for r in range(4):
                    x = V(sreg(t, tp)[1] + r)
                    p.valu('v_fma_f32', x, x, sC, V(NEGM0 + t))
            for r in range(4):
                x = V(sreg(t, tp)[1] + r)
                p.valu('v_exp_f32', x, x)
    for t in range(nt):
        b = S0 + t * 8
        if PK & 2:
            tp2 = V(AB0 + 8, 2)
            p.valu('v_pk_add_f32', tp2, V(b, 2), V(b + 2, 2))
            p.valu('v_pk_add_f32', tp2, tp2, V(b + 4, 2))
            p.valu('v_pk_add_f32', tp2, tp2, V(b + 6, 2))
            p.valu('v_add_f32', T[t], V(AB0 + 8), V(AB0 + 9))
            continue
        p.valu('v_add_f32', T[t], V(b), V(b + 1))
        p.valu('v_add_f32', T[4], V(b + 2), V(b + 3))
        p.valu('v_add_f32', T[t], T[t], V(b + 4))
        p.valu('v_add_f32', T[4], T[4], V(b + 5))
        p.valu('v_add_f32', T[t], T[t], V(b + 6))
        p.valu('v_add_f32', T[4], T[4], V(b + 7))
        p.valu('v_add_f32', T[t], T[t], T[4])
    p.valu('v_max3_f32', T[4], T[0], T[1], T[2])
    if nt == 4:
        p.valu('v_max_f32', T[4], T[4], T[3])
    p.valu('v_cmp_nge_f32', 'vcc', sTHR, T[4])
    p.branch('s_cbranch_vccnz', f'redo{sfx}')
    p.label(f'cont{sfx}')
    p.salu('s_mov_b32', sFLAG, 0)
    if P1PROF == 2:
        cstamp(p, 4, 8)

    def vissue(k):
        b = abuf(k)
        p.ds_read('ds_read_b64_tr_b16', V(b[1], 2), vVRD, TILE + 32 * k)
        p.ds_read('ds_read_b64_tr_b16', V(b[1] + 2, 2), vVRD, TILE + 32 * k + L.V_RD2)
    for k in range(3):
        vissue(k)
    for t in range(nt):
        p.valu('v_add_f32', V(L0 + t), V(L0 + t), T[t])
        b = S0 + t * 8
        for k in range(4):
            p.valu('v_cvt_pk_bf16_f32', V(b + k), V(b + 2 * k), V(b + 2 * k + 1))
    if P1PROF == 2:
        cstamp(p, 5, 8)
    p.salu('s_add_u32', sTMP, sCNT, 3)
    p.salu('s_and_b32', sTMP, sTMP, 3)
    p.salu('s_mul_i32', sM0B, sTMP, 2 * STEP)
    p.salu('s_add_u32', sM0B, sM0B, sKVB)
    p.salu('s_add_u32', sCNT, sCNT, 1)
    p.salu('s_and_b32', sTMP, sCNT, 3)
    p.salu('s_mul_i32', sTMP, sTMP, 2 * STEP)
    p.salu('s_sub_u32', sDEL, sTMP, sOFF)
    p.salu('s_mov_b32', sOFF, sTMP)
    for j in range(8):
        p.waitcnt(lgkm=2 * min(7 - j, 2))
        for t in range(nt):
            p.mfma(acc(j, t), abuf(j), preg(t), acc(j, t))
        if j + 3 < 8:
            vissue(j + 3)
        if j < 4:
            kvdma(sKOFF, 0, j, m0base=sM0B)
        if P1PROF == 2 and j == 3:
            cstamp(p, 6, 9)
    p.salu('s_add_u32', sKOFF, sKOFF, 8192)
    p.valu('v_add_u32', vKRD, sDEL, vKRD)
    p.valu('v_add_u32', vVRD, sDEL, vVRD)
    p.scmp('s_cmp_lt_u32', sCNT, 16)
    p.branch('s_cbranch_scc1', f'chunk_top{sfx}')


def tp_ops(p, nt, t, tp):
    b = S0 + t * 8 + 4 * tp
    ops = []
    for r in range(4):
        ops.append(lambda r=r: p.valu('v_fma_f32', V(b + r), V(b + r), sC, V(NEGM0 + t)))
    for r in range(4):
        ops.append(lambda r=r: p.valu('v_exp_f32', V(b + r), V(b + r)))
    if tp == 0:
        ops.append(lambda: p.valu('v_add_f32', T[t], V(b), V(b + 1)))
        ops.append(lambda: p.valu('v_add_f32', T[4], V(b + 2), V(b + 3)))
        ops.append(lambda: p.valu('v_add_f32', T[t], T[t], T[4]))
        ops.append(lambda: p.valu('v_cvt_pk_bf16_f32', V(b), V(b), V(b + 1)))
        ops.append(lambda: p.valu('v_cvt_pk_bf16_f32', V(b + 1), V(b + 2), V(b + 3)))
    else:
        ops.append(lambda: p.valu('v_add_f32', T[t], T[t], V(b)))
        ops.append(lambda: p.valu('v_add_f32', T[4], V(b + 1), V(b + 2)))
        ops.append(lambda: p.valu('v_add_f32', T[t], T[t], V(b + 3)))
        ops.append(lambda: p.valu('v_add_f32', T[t], T[t], T[4]))
    return ops


def qk_block(p, nt, interleave):
    kfr = [(tp, s) for tp in range(2) for s in range(4)]

    def kissue(k):
        tp, s = kfr[k]
        p.ds_read('ds_read_b128', abuf(k), vKRD, tp * L.K_T + s * L.K_S)
    pend = []
    if interleave:
        for t in range(nt):
            pend += tp_ops(p, nt, t, 0)
    per = -(-len(pend) // 4)
    for k in range(3):
        kissue(k)
    for k, (tp, s) in enumerate(kfr):
        p.waitcnt(lgkm=min(7 - k, 2))
        for t in range(nt):
            p.mfma(sreg(t, tp), abuf(k), qf(t, s), 0 if s == 0 else sreg(t, tp))
            if k >= 4 and pend:
                for _ in range(-(-per // nt)):
                    if pend:
                        pend.pop(0)()
        if k + 3 < 8:
            kissue(k + 3)
    for f in pend:
        f()


def attn_loop2(p, nt, sfx, kvdma, sKVB):
    sKOFF, sOFF, sM0B, sDEL = sA[0:4]
    p.label(f'chunk_top{sfx}')
    p.waitcnt(vm=8)
    p.barrier()
    p.scmp('s_cmp_lg_u32', sFLAG, 0)
    p.branch('s_cbranch_scc1', f'slow_qk{sfx}')
    qk_block(p, nt, True)
    p.label(f'tp1{sfx}')
    p.nop(3)
    for t in range(nt):
        for f in tp_ops(p, nt, t, 1):
            f()
    p.valu('v_max3_f32', T[4], T[0], T[1], T[2])
    if nt == 4:
        p.valu('v_max_f32', T[4], T[4], T[3])
    p.valu('v_cmp_nge_f32', 'vcc', sTHR, T[4])
    p.branch('s_cbranch_vccnz', f'redo{sfx}')
    p.label(f'cont{sfx}')
    p.salu('s_mov_b32', sFLAG, 0)

    def vissue(k):
        b = abuf(k)
        p.ds_read('ds_read_b64_tr_b16', V(b[1], 2), vVRD, TILE + 32 * k)
        p.ds_read('ds_read_b64_tr_b16', V(b[1] + 2, 2), vVRD, TILE + 32 * k + L.V_RD2)
    for k in range(3):
        vissue(k)
    for t in range(nt):
        b = S0 + t * 8
        p.valu('v_cvt_pk_bf16_f32', V(b + 2), V(b + 4), V(b + 5))
        p.valu('v_cvt_pk_bf16_f32', V(b + 3), V(b + 6), V(b + 7))
    for j in range(8):
        p.waitcnt(lgkm=2 * min(7 - j, 2))
        for t in range(nt):
            p.mfma(acc(j, t), abuf(j), preg(t), acc(j, t))
        if j + 3 < 8:
            vissue(j + 3)
        if j == 0:
            for t in range(nt):
                p.valu('v_add_f32', V(L0 + t), V(L0 + t), T[t])
            p.salu('s_add_u32', sTMP, sCNT, 3)
            p.salu('s_and_b32', sTMP, sTMP, 3)
            p.salu('s_mul_i32', sM0B, sTMP, 2 * STEP)
            p.salu('s_add_u32', sM0B, sM0B, sKVB)
            p.salu('s_add_u32', sCNT, sCNT, 1)
            p.salu('s_and_b32', sTMP, sCNT, 3)
            p.salu('s_mul_i32', sTMP, sTMP, 2 * STEP)
            p.salu('s_sub_u32', sDEL, sTMP, sOFF)
            p.salu('s_mov_b32', sOFF, sTMP)
        if 1 <= j <= 4:
            kvdma(sKOFF, 0, j - 1, m0base=sM0B)
        if j == 5:
            p.salu('s_add_u32', sKOFF, sKOFF, 8192)
            p.valu('v_add_u32', vKRD, sDEL, vKRD)
            p.valu('v_add_u32', vVRD, sDEL, vVRD)
    p.scmp('s_cmp_lt_u32', sCNT, 16)
    p.branch('s_cbranch_scc1', f'chunk_top{sfx}')


def attn_ool2(p, nt, sfx):
    p.label(f'redo{sfx}')
    p.scmp('s_cmp_eq_u32', sFLAG, 2)
    p.branch('s_cbranch_scc1', f'cont{sfx}')
    p.label(f'slow_qk{sfx}')
    qk_block(p, nt, False)
    p.nop(7)
    for t in range(nt):
        b = S0 + t * 8
        p.valu('v_max3_f32', T[0], V(b), V(b + 1), V(b + 2))
        p.valu('v_max3_f32', T[1], V(b + 3), V(b + 4), V(b + 5))
        p.valu('v_max3_f32', T[0], T[0], V(b + 6), V(b + 7))
        p.valu('v_max_f32', T[0], T[0], T[1])
        xlane_reduce(p, 'v_max_f32', T[0], T[1])
        p.valu('v_mul_f32', T[0], sNC, T[0])
        p.valu('v_min_f32', T[0], V(NEGM0 + t), T[0])
        p.valu('v_sub_f32', T[1], T[0], V(NEGM0 + t))
        p.valu('v_exp_f32', T[1], T[1])
        p.valu('v_mov_b32', V(NEGM0 + t), T[0])
        p.valu('v_mul_f32', V(L0 + t), V(L0 + t), T[1])
        for j in range(8):
            for r in range(4):
                a_ = V(acc(j, t)[1] + r)
                p.valu('v_mul_f32', a_, a_, T[1])
    for t in range(nt):
        for f in tp_ops(p, nt, t, 0):
            f()
    p.salu('s_mov_b32', sFLAG, 2)
    p.branch('s_branch', f'tp1{sfx}')


def attn_ool(p, nt, sfx):
    p.label(f'redo{sfx}')
    p.scmp('s_cmp_eq_u32', sFLAG, 2)
    p.branch('s_cbranch_scc1', f'cont{sfx}')
    p.salu('s_mov_b32', sFLAG, 1)
    p.branch('s_branch', f'qk_start{sfx}')

    p.label(f'rescale{sfx}')
    p.nop(7)
    for t in range(nt):
        b = S0 + t * 8
        p.valu('v_max3_f32', T[0], V(b), V(b + 1), V(b + 2))
        p.valu('v_max3_f32', T[1], V(b + 3), V(b + 4), V(b + 5))
        p.valu('v_max3_f32', T[0], T[0], V(b + 6), V(b + 7))
        p.valu('v_max_f32', T[0], T[0], T[1])
        xlane_reduce(p, 'v_max_f32', T[0], T[1])
        p.valu('v_mul_f32', T[0], sNC, T[0])
        p.valu('v_min_f32', T[0], V(NEGM0 + t), T[0])
        p.valu('v_sub_f32', T[1], T[0], V(NEGM0 + t))
        p.valu('v_exp_f32', T[1], T[1])
        p.valu('v_mov_b32', V(NEGM0 + t), T[0])
        p.valu('v_mul_f32', V(L0 + t), V(L0 + t), T[1])
        for j in range(8):
            for r in range(4):
                a = V(acc(j, t)[1] + r)
                p.valu('v_mul_f32', a, a, T[1])
    p.salu('s_mov_b32', sFLAG, 2)
    p.branch('s_branch', f'softmax{sfx}')


def body(p, nt, sfx):
    sRG, sKS, sKW, sKX, sWD, sXD, sX1, sX2, sKVB, sWDB, sR4 = sA[0:11]

    def xreg(n, t):
        return V(32 + (n % 2) * 16 + t * 4, 4)

    def kvdma(chunk_off_sgpr, lds_off, q, m0base=None):
        base, voff, srd, off = [(0, vKD, K_SRD, 0), (L.BLK2_K - 256, vKD, K_SRD, 256),
                                (TILE, vVD, V_SRD, 0), (TILE + L.BLK2_T - 256, vVD, V_SRD, 256)][q]
        p.salu('s_add_u32', 'm0', sKVB if m0base is None else m0base, lds_off + base)
        p.dma(voff, srd, chunk_off_sgpr, off=off, flags=kvf())

    def kv_static(c):
        p.salu('s_mov_b32', sTMP2, c * 8192)
        for q in range(4):
            kvdma(sTMP2, kv_off_static(c), q)

    def wdma(e, slot_sgpr_or_int, kw):
        if isinstance(slot_sgpr_or_int, int):
            p.salu('s_add_u32', 'm0', sWDB, slot_sgpr_or_int + e * L.BLK2_T)
        else:
            p.salu('s_add_u32', 'm0', slot_sgpr_or_int, e * L.BLK2_T)
        if e == 0:
            p.dma(vWD, W_SRD, kw)
        else:
            p.salu('s_add_u32', sTMP, kw, 8192)
            p.dma(vWD, W_SRD, sTMP)

    def xdma(e, slot, kx):
        tsg = (sX1, sX2)[e]
        p.salu('s_lshr_b32', sTMP, tsg, 4)
        p.salu('s_add_u32', 'm0', sTMP, slot)
        p.salu('s_add_u32', sTMP, tsg, kx)
        p.dma(vX, X_SRD, sTMP)

    nx = 1 if (nt == 4 and XBAL) else 2
    stamp(p, 1)
    for st in range(3):
        if st:
            p.salu('s_add_u32', sKS, sKS, 1)
            p.salu('s_and_b32', sKS, sKS, 15)
        p.salu('s_lshl_b32', sKW, sKS, 18)
        p.salu('s_lshl_b32', sKX, sKS, 6)
        wdma(0, st * TILE, sKW)
        wdma(1, st * TILE, sKW)
        xdma(0, X_BASE + st * X_SLOT, sKX)
        if nx == 2:
            xdma(1, X_BASE + st * X_SLOT, sKX)
    kv_static(0)
    zero_acc(p, nt)
    p.salu('s_mov_b32', sRG, 0)
    p.salu('s_mov_b32', sR4, 0)
    p.salu('s_mov_b32', sCNT, 0)
    p.waitcnt(vm=4 + 2 * (2 + nx))
    p.barrier()
    for t in range(nt):
        p.ds_read('ds_read_b128', xreg(0, t), vXB, t * 1024)
    for k in range(3):
        b = abuf4(k)
        p.ds_read('ds_read_b64_tr_b16', V(b[1], 2), vWB, 32 * k)
        p.ds_read('ds_read_b64_tr_b16', V(b[1] + 2, 2), vWB, 32 * k + L.W_RD2)
    p.valu('v_mov_b32', vWC, vWB)
    p.valu('v_add_u32', vXC, X_SLOT, vXB)
    stamp(p, 2)
    p.label(f'p1_loop{sfx}')
    for par in range(2):
        def book_a():
            p.salu('s_mul_i32', sXD, sRG, X_SLOT)
            p.salu('s_add_u32', sXD, sXD, X_BASE)
            p.salu('s_add_u32', sWD, sR4, 3 * TILE)
            p.scmp('s_cmp_ge_u32', sWD, 4 * TILE)
            p.salu('s_cselect_b32', sTMP, 4 * TILE, 0)
            p.salu('s_sub_u32', sWD, sWD, sTMP)
            p.salu('s_add_u32', sWD, sWD, sWDB)
            p.salu('s_add_u32', sR4, sR4, TILE)
            p.scmp('s_cmp_eq_u32', sR4, 4 * TILE)
            p.salu('s_cselect_b32', sR4, 0, sR4)
            p.valu('v_add_u32', vWN, sR4, vWB)
            p.salu('s_add_u32', sKS, sKS, 1)
            p.salu('s_and_b32', sKS, sKS, 15)
            p.salu('s_lshl_b32', sKW, sKS, 18)
            p.salu('s_lshl_b32', sKX, sKS, 6)

        def book_b():
            p.salu('s_add_u32', sRG, sRG, 1)
            p.scmp('s_cmp_eq_u32', sRG, 3)
            p.salu('s_cselect_b32', sRG, 0, sRG)
            p.salu('s_add_u32', sTMP, sRG, 1)
            p.scmp('s_cmp_eq_u32', sTMP, 3)
            p.salu('s_cselect_b32', sTMP, 0, sTMP)
            p.salu('s_mul_i32', sTMP, sTMP, X_SLOT)
            p.valu('v_add_u32', vXC, sTMP, vXB)
        if P1PROF == 1:
            cstamp(p, 0 if par == 0 else 7, 3)
        p.scmp('s_cmp_eq_u32', sCNT, 0)
        p.branch('s_cbranch_scc1', f'p1_w{par}{sfx}')
        p.waitcnt(vm=2 + nx)
        p.label(f'p1_w{par}{sfx}')
        p.waitcnt(vm=6 + nx)
        if P1PROF == 1 and par == 0:
            cstamp(p, 1, 3)
        p.barrier()
        if P1PROF == 1 and par == 0:
            cstamp(p, 2, 3)
        extra = {0: book_a, 1: lambda: wdma(0, sWD, sKW), 2: lambda: wdma(1, sWD, sKW),
                 4: lambda: xdma(0, sXD, sKX), 5: lambda: xdma(1, sXD, sKX), 6: book_b}
        if nx == 1:
            del extra[5]
        for j in range(8):
            p.waitcnt(lgkm=4 + (nt if j in (1, 2, 3) else 0))
            if P1PROF == 1 and par == 0 and j in (1, 3, 4, 6):
                cstamp(p, {1: 3, 3: 4, 4: 5, 6: 6}[j], 3)
            for t in range(nt):
                p.mfma(acc(j, t), abuf4(j), xreg(par, t), acc(j, t))
            b = abuf4(j + 3)
            base = vWC if j + 3 < 8 else vWN
            kk = (j + 3) % 8
            p.ds_read('ds_read_b64_tr_b16', V(b[1], 2), base, 32 * kk)
            p.ds_read('ds_read_b64_tr_b16', V(b[1] + 2, 2), base, 32 * kk + L.W_RD2)
            if j == 0:
                for t in range(nt):
                    p.ds_read('ds_read_b128', xreg(par + 1, t), vXC, t * 1024)
            if j in extra:
                extra[j]()
        p.valu('v_mov_b32', vWC, vWN)
    p.salu('s_add_u32', sCNT, sCNT, 1)
    p.scmp('s_cmp_lt_u32', sCNT, 8)
    p.branch('s_cbranch_scc1', f'p1_loop{sfx}')
    p.waitcnt(lgkm=0)
    stamp(p, 3)
    for t in range(nt):
        for s in range(4):
            pack_pair(p, qf(t, s), acc(2 * s, t), acc(2 * s + 1, t))
    sKOFF, sOFF, sM0B, sDEL = sA[0:4]
    ec = ECompiler(p, {'l': V(0), 'gb': sTMP2}, T[:])
    p.salu('s_mul_i32', sTMP2, sG, STEP)
    ec.emit(L.K_RD + var('gb'), vKRD)
    ec.emit(L.V_RD + var('gb'), vVRD)
    for t in range(nt):
        p.valu('v_mov_b32', V(NEGM0 + t), 0x7f800000)
        p.valu('v_mov_b32', V(L0 + t), 0)
    p.salu('s_mov_b32', sCNT, 0)
    p.salu('s_mov_b32', sFLAG, 1)
    p.salu('s_mov_b32', sKOFF, 3 * 8192)
    p.salu('s_mov_b32', sOFF, 0)
    p.waitcnt(vm=0)
    p.barrier()
    kv_static(1)
    kv_static(2)

    if STAGGER:
        p.scmp('s_cmp_eq_u32', sG, 0)
        p.branch('s_cbranch_scc0', f'p2_g1{sfx}')
        attn_loop(p, nt, sfx + 'a', 0, kvdma, sKVB)
        p.branch('s_branch', f'p2_done{sfx}')
        p.label(f'p2_g1{sfx}')
        p.salu('s_mov_b32', sFLAG, 3)
        attn_loop(p, nt, sfx + 'b', 1, kvdma, sKVB)
        p.label(f'p2_done{sfx}')
    elif ILV:
        attn_loop2(p, nt, sfx + 'a', kvdma, sKVB)
    else:
        attn_loop(p, nt, sfx + 'a', 0, kvdma, sKVB)
    stamp(p, 4)

    osc = 'sc1' if STAGE >= 2 else 'nt'
    p.valu('v_lshlrev_b32', T[0], 4, V(0))
    p.salu('s_lshl_b32', sTMP, sT0, 12)
    p.valu('v_add_u32', T[0], sTMP, T[0])
    for t in range(nt):
        xlane_reduce(p, 'v_add_f32', V(L0 + t), T[1])
        p.valu('v_rcp_f32', V(L0 + t), V(L0 + t))
    for t in range(nt):
        p.salu('s_mov_b32', sTMP, t * 4096)
        for s in range(4):
            d = qf(t, s)
            pack_pair(p, d, acc(2 * s, t), acc(2 * s + 1, t), scale=V(L0 + t))
            p.bstore(d, T[0], O_SRD, sTMP, off=s * 1024, flags=osc)
    if STAGE == 1 and WOPF:
        p.salu('s_lshl_b32', sTMP, sKQ, 20)
        build_srd(p, W_SRD, S(48), S(49), sTMP, 1 << 20)
        p.salu('s_lshr_b32', sTMP, S(2), 3)
        p.salu('s_lshl_b32', sTMP, sTMP, 3)
        p.salu('s_add_u32', sTMP, sTMP, sW8)
        p.salu('s_lshl_b32', sTMP, sTMP, 12)
        p.valu('v_lshlrev_b32', T[1], 4, V(0))
        for e in range(4):
            p.bload(V(128 + 4 * e, 4), T[1], W_SRD, sTMP, off=e * 1024)
    if STAGE == 1:
        stamp(p, 5)
        if PROF and not P1PROF:
            p.raw(f's_memrealtime s[{STAMP0 + 14}:{STAMP0 + 15}]', 'smem')
        stamp_flush(p, 8)
        p.raw('s_endpgm')
    else:
        phase3(p, nt, sfx)

    if ILV and not STAGGER:
        attn_ool2(p, nt, sfx + 'a')
    else:
        attn_ool(p, nt, sfx + 'a')
    if STAGGER:
        attn_ool(p, nt, sfx + 'b')


def poll_wait(p, shift, target, lab):
    p.scmp('s_cmp_lg_u32', sW8, 0)
    p.branch('s_cbranch_scc1', f'{lab}_join')
    p.salu('s_mov_b32', sTMP2, 0)
    p.label(f'{lab}_spin')
    p.raw(f'buffer_load_dword v{T[2][1]}, v{T[4][1]}, s[32:35], 0 offen sc1', 'vmem', {('v', T[2][1])},
          {('v', T[4][1])})
    p.waitcnt(vm=0)
    p.valu('v_readfirstlane_b32', sTMP, T[2])
    p.salu('s_lshr_b32', sTMP, sTMP, shift)
    p.salu('s_and_b32', sTMP, sTMP, 0xffff)
    p.scmp('s_cmp_ge_u32', sTMP, target)
    p.branch('s_cbranch_scc1', f'{lab}_done')
    p.raw('s_sleep 1')
    p.salu('s_add_u32', sTMP2, sTMP2, 1)
    p.scmp('s_cmp_lt_u32', sTMP2, SPIN_MAX)
    p.branch('s_cbranch_scc1', f'{lab}_spin')
    p.label(f'{lab}_done')
    p.raw('buffer_inv sc1')
    p.waitcnt(vm=0)
    p.label(f'{lab}_join')


def phase3(p, nt, sfx):
    sKB, sKWo, sSW, sWDB, sSB, sR4, sWD = sA[0:7]
    v3B, v3C, v3N = V(12), V(13), V(14)

    def a4(k):
        return V(16 + 4 * (k % 4), 4)

    def breg(n, t):
        return V(32 + ((n - 4) % 3) * 16 + t * 4, 4)

    def head_off(sig, dst):
        p.salu('s_lshr_b32', dst, sig, 2)
        p.salu('s_add_u32', dst, dst, sNT)
        p.salu('s_and_b32', dst, dst, 3)
        p.salu('s_lshl_b32', dst, dst, 1)
        p.salu('s_add_u32', dst, dst, sG)

    def adv_w():
        head_off(sSW, sKWo)
        p.salu('s_lshl_b32', sKWo, sKWo, 2)
        p.salu('s_and_b32', sTMP, sSW, 3)
        p.salu('s_add_u32', sKWo, sKWo, sTMP)
        p.salu('s_lshl_b32', sKWo, sKWo, 15)
        p.salu('s_add_u32', sSW, sSW, 1)

    def adv_b():
        head_off(sSB, sKB)
        p.salu('s_mul_i32', sKB, sKB, O_UNIT)
        p.salu('s_and_b32', sTMP, sSB, 3)
        p.salu('s_lshl_b32', sTMP, sTMP, 10)
        p.salu('s_add_u32', sKB, sKB, sTMP)
        p.salu('s_add_u32', sSB, sSB, 1)

    def bload1(step, t):
        if t == 0:
            p.bload(breg(step, t), vX, X_SRD, sKB, flags='sc1')
        else:
            p.salu('s_add_u32', sTMP, sKB, 4096 * t)
            p.bload(breg(step, t), vX, X_SRD, sTMP, flags='sc1')

    def wdma1(dest, e):
        if isinstance(dest, int):
            p.salu('s_add_u32', 'm0', sWDB, dest + e * L.BLK2_T - e * 1024)
        else:
            p.salu('s_add_u32', 'm0', dest, e * L.BLK2_T - e * 1024)
        p.dma(vWD, W_SRD, sKWo, off=e * 1024)

    p.salu('s_lshl_b32', sTMP, sX, 3)
    p.salu('s_add_u32', sTMP, sTMP, sB)
    p.salu('s_lshl_b32', sTMP2, sTMP, 2)
    p.salu('s_add_u32', sSW, sTMP2, sKQ)
    p.salu('s_lshl_b32', sSW, sSW, 2)
    p.valu('v_mov_b32', T[4], sSW)
    p.salu('s_lshl_b32', sTMP, sTMP, 5)
    p.salu('s_lshl_b32', sTMP2, sKQ, 3)
    p.salu('s_add_u32', sTMP, sTMP, sTMP2)
    p.salu('s_mul_i32', sTMP, sTMP, O_UNIT)
    build_srd(p, X_SRD, S(54), S(55), sTMP, 8 * O_UNIT)
    p.salu('s_lshl_b32', sTMP, sKQ, 20)
    p.salu('s_lshl_b32', sTMP2, sNT, 8)
    p.salu('s_add_u32', sTMP, sTMP, sTMP2)
    p.salu('s_sub_u32', sTMP2, 1 << 20, sTMP2)
    build_srd(p, W_SRD, S(48), S(49), sTMP, sTMP2)
    p.salu('s_mul_i32', sTMP2, sG, 4 * TILE)
    p.salu('s_add_u32', sWDB, sWB, sTMP2)
    ec = ECompiler(p, {'l': V(0), 'w': sW, 't0': sT0, 'gb': sTMP2}, [T[0], T[1], T[2], V(13), V(14)])
    l = var('l')
    ec.emit(L.W_RD + var('gb'), v3B)
    ec.emit(L.WO_ROW * 1024 + (l & 15) * 16, vWD)
    ec.emit((var('t0') << 12) + l * 16, vX)
    p.barrier()
    p.salu('s_mov_b32', sSW, 0)
    p.salu('s_mov_b32', sSB, 4)
    for st in range(3):
        adv_w()
        wdma1(st * TILE, 0)
        wdma1(st * TILE, 1)
    zero_acc(p, nt)
    p.valu('v_mov_b32', T[3], 1)

    def gstep(s, bsrc, static, extra):
        for j in range(8):
            p.waitcnt(lgkm=4)
            for t in range(nt):
                p.mfma(acc(j, t), a4(j), bsrc(t), acc(j, t))
            k = j + 3
            bb = a4(k)
            if static:
                off = ((s if k < 8 else s + 1) % 4) * TILE + 32 * (k % 8)
                base = v3B
            else:
                off = 32 * (k % 8)
                base = v3C if k < 8 else v3N
            p.ds_read('ds_read_b64_tr_b16', V(bb[1], 2), base, off)
            p.ds_read('ds_read_b64_tr_b16', V(bb[1] + 2, 2), base, off + L.W_RD2)
            for f in extra.get(j, []):
                f()

    def signal():
        p.salu('s_mov_b64', S(sA[8][1], 2), 'exec')
        p.salu('s_mov_b64', 'exec', 1)
        p.raw(f'buffer_atomic_add v{T[3][1]}, v{T[4][1]}, s[32:35], 0 offen sc1', 'store', (),
              {('v', T[3][1]), ('v', T[4][1])})
        p.salu('s_mov_b64', 'exec', S(sA[8][1], 2))

    p.waitcnt(vm=4)
    p.barrier()
    for k in range(3):
        bb = a4(k)
        p.ds_read('ds_read_b64_tr_b16', V(bb[1], 2), v3B, 32 * k)
        p.ds_read('ds_read_b64_tr_b16', V(bb[1] + 2, 2), v3B, 32 * k + L.W_RD2)
    signal()
    for s in range(4):
        if s == 0:
            p.waitcnt(vm=3)
        elif s == 1:
            p.waitcnt(vm=3)
        elif s == 2:
            p.waitcnt(vm=2)
            poll_wait(p, 0, 32, f'sy1{sfx}')
        else:
            p.waitcnt(vm=2 + nt)
        p.barrier()
        extra = {0: [adv_w], 1: [lambda s=s: wdma1(((s + 3) % 4) * TILE, 0)],
                 2: [lambda s=s: wdma1(((s + 3) % 4) * TILE, 1)]}
        if s >= 2:
            extra[0].append(adv_b)
            for t in range(nt):
                extra.setdefault(3 + t, []).append(lambda t=t, s=s: bload1(s + 2, t))
        gstep(s, lambda t, s=s: qf(t, s), True, extra)
    stamp(p, 5)
    p.salu('s_mov_b32', sCNT, 0)
    p.salu('s_mov_b32', sR4, 0)
    p.valu('v_mov_b32', v3C, v3B)
    p.label(f'p3_loop{sfx}')
    for u in range(3):
        s = 4 + u
        p.waitcnt(vm=2 + nt)
        p.barrier()

        def book():
            p.salu('s_add_u32', sWD, sR4, 3 * TILE)
            p.scmp('s_cmp_ge_u32', sWD, 4 * TILE)
            p.salu('s_cselect_b32', sTMP, 4 * TILE, 0)
            p.salu('s_sub_u32', sWD, sWD, sTMP)
            p.salu('s_add_u32', sWD, sWD, sWDB)
            p.salu('s_add_u32', sR4, sR4, TILE)
            p.scmp('s_cmp_eq_u32', sR4, 4 * TILE)
            p.salu('s_cselect_b32', sR4, 0, sR4)
            p.valu('v_add_u32', v3N, sR4, v3B)
        extra = {0: [book, adv_w, adv_b], 1: [lambda: wdma1(sWD, 0)], 2: [lambda: wdma1(sWD, 1)]}
        for t in range(nt):
            extra.setdefault(3 + t, []).append(lambda t=t, s=s: bload1(s + 2, t))
        gstep(s, lambda t, s=s: breg(s, t), False, extra)
        p.valu('v_mov_b32', v3C, v3N)
    p.salu('s_add_u32', sCNT, sCNT, 1)
    p.scmp('s_cmp_lt_u32', sCNT, 4)
    p.branch('s_cbranch_scc1', f'p3_loop{sfx}')
    stamp(p, 6)
    p.waitcnt(vm=0, lgkm=0)
    p.barrier()
    p.valu('v_lshlrev_b32', T[0], 4, V(0))
    p.salu('s_lshl_b32', sTMP, sT0, 13)
    p.valu('v_add_u32', T[0], sTMP, T[0])
    p.scmp('s_cmp_eq_u32', sG, 0)
    p.branch('s_cbranch_scc1', f'p3_g0{sfx}')
    for t in range(nt):
        for j in range(8):
            p.ds_write('ds_write_b128', T[0], acc(j, t), t * 8192 + j * 1024)
    p.waitcnt(lgkm=0)
    p.barrier()
    if STAGE >= 3:
        p.barrier()
        p.barrier()
    stamp(p, 7)
    stamp_flush(p, 8)
    p.raw('s_endpgm')
    p.label(f'p3_g0{sfx}')
    p.barrier()
    for t in range(nt):
        for j in range(8):
            p.ds_read('ds_read_b128', V(64 + (j + 8 * (t % 2)) * 4, 4), T[0], t * 8192 + j * 1024)
        p.waitcnt(lgkm=0)
        for j in range(8):
            for r in range(4):
                a = V(acc(j, t)[1] + r)
                p.valu('v_add_f32', a, a, V(64 + (j + 8 * (t % 2)) * 4 + r))
        if STAGE == 2:
            for jh in range(2):
                p.salu('s_mov_b32', sTMP, t * 8192 + jh * 4096)
                for jj in range(4):
                    p.bstore(acc(jh * 4 + jj, t), T[0], P_SRD, sTMP, off=jj * 1024, flags='nt' if K2X & 256 else '')
        else:
            for jh in range(2):
                p.salu('s_mov_b32', sTMP, t * 8192 + jh * 4096)
                for jj in range(4):
                    p.bstore(acc(jh * 4 + jj, t), T[0], P_SRD, sTMP, off=jj * 1024, flags='sc1')
    if STAGE == 2:
        stamp(p, 7)
        stamp_flush(p, 8)
        p.raw('s_endpgm')
        return
    p.salu('s_lshl_b32', sTMP, sX, 3)
    p.salu('s_add_u32', sTMP, sTMP, sB)
    p.salu('s_lshl_b32', sTMP, sTMP, 2)
    p.salu('s_add_u32', sTMP, sTMP, sNT)
    p.salu('s_lshl_b32', sTMP2, sTMP, 2)
    p.valu('v_mov_b32', T[3], sTMP2)
    p.valu('v_mov_b32', T[4], sTMP2)
    p.salu('s_mul_i32', sTMP, sTMP, PART_UNIT)
    p.salu('s_add_u32', sTMP, sTMP, PART_BASE)
    build_srd(p, X_SRD, S(54), S(55), sTMP, 193 * PART_UNIT)
    signal_and_wait(p, 0x10000, 16, f'sy2{sfx}')
    p.salu('s_lshl_b32', sKB, sKQ, 11)
    for t in range(nt):
        for src in range(4):
            p.salu('s_add_u32', sTMP, sKB, src * 64 * PART_UNIT + t * 8192)
            for jj in range(2):
                p.bload(V(64 + ((t * 4 + src) * 2 + jj) * 4, 4), T[0], X_SRD, sTMP, off=jj * 1024, flags='sc1')
    p.salu('s_mul_i32', sTMP, sB, 208)
    p.salu('s_lshl_b32', sTMP2, sT0, 4)
    p.salu('s_add_u32', sTMP, sTMP, sTMP2)
    p.salu('s_lshl_b32', sTMP, sTMP, 11)
    p.salu('s_lshl_b32', sTMP2, sX, 10)
    p.salu('s_add_u32', sTMP, sTMP, sTMP2)
    p.salu('s_lshl_b32', sTMP2, sNT, 8)
    p.salu('s_add_u32', sTMP, sTMP, sTMP2)
    p.salu('s_lshl_b32', sTMP2, sKQ, 6)
    p.salu('s_add_u32', sTMP, sTMP, sTMP2)
    ec = ECompiler(p, {'l': V(0), 'base': sTMP}, [T[1], T[2], V(12), V(13)])
    ec.emit(var('base') + (l & 15) * 2048 + L.sig(l >> 4) * 16, V(14))
    for t in range(nt):
        p.waitcnt(vm=(nt - 1 - t) * 8 + t)
        base = 64 + t * 32
        for k in range(8):
            p.valu('v_add_f32', V(base + k), V(base + k), V(base + 8 + k))
            p.valu('v_add_f32', V(base + 16 + k), V(base + 16 + k), V(base + 24 + k))
        for k in range(8):
            p.valu('v_add_f32', V(base + k), V(base + k), V(base + 16 + k))
        pack_pair(p, V(20 + 4 * (t % 3), 4), V(base, 4), V(base + 4, 4))
        p.salu('s_mov_b32', sTMP2, t * 32768)
        p.bstore(V(20 + 4 * (t % 3), 4), V(14), OUT_SRD, sTMP2)
    stamp(p, 7)
    stamp_flush(p, 8)
    p.raw('s_endpgm')


def gen_main():
    p = Prog()
    p.scmp('s_cmp_ge_u32', S(2), 256)
    p.branch('s_cbranch_scc1', 'k_end')
    stamp(p, 0)
    if PROF and not P1PROF and STAGE == 1:
        p.raw(f's_memrealtime s[{STAMP0 + 12}:{STAMP0 + 13}]', 'smem')
    p.salu('s_and_b32', sTMP, S(2), 7)
    p.salu('s_lshr_b32', sTMP2, S(2), 3)
    p.salu('s_lshr_b32', sX, sTMP, 2)
    p.salu('s_and_b32', sKQ, sTMP, 3)
    p.salu('s_lshr_b32', sB, sTMP2, 2)
    p.salu('s_and_b32', sNT, sTMP2, 3)
    p.salu('s_mul_i32', sTMP, sX, 40)
    p.salu('s_add_u32', S(72), S(0), sTMP)
    p.salu('s_addc_u32', S(73), S(1), 0)
    p.sload('s_load_dwordx8', S(40, 8), S(72, 2), 0)
    p.sload('s_load_dwordx2', S(48, 2), S(72, 2), 32)
    p.sload('s_load_dwordx4', S(50, 4) if False else S(52, 4), S(0, 2), 88)
    p.sload('s_load_dwordx2', S(50, 2), S(0, 2), 80)
    p.valu('v_lshrrev_b32', T[0], 6, V(0))
    p.valu('v_readfirstlane_b32', sW8, T[0])
    p.valu('v_and_b32', V(0), 63, V(0))
    p.salu('s_lshr_b32', sG, sW8, 2)
    p.salu('s_and_b32', sW, sW8, 3)
    p.salu('s_mul_i32', sWB, sW, L.WBASE)
    p.salu('s_mul_i32', sT0, sW, 3)
    p.scmp('s_cmp_gt_u32', sW, sG)
    p.salu('s_addc_u32', sT0, sT0, 0)
    p.salu('s_mov_b32', sC, f32bits(SCALE_C))
    p.salu('s_mov_b32', S(100), f32bits(SCALE_C))
    p.salu('s_mov_b32', S(101), f32bits(SCALE_C))
    p.salu('s_mov_b32', sNC, f32bits(-SCALE_C))
    p.salu('s_mov_b32', sTHR, f32bits(4096.0))
    sRG, sKS, sKW, sKX, sWD, sXD, sX1, sX2, sKVB, sWDB = sA[0:10]
    p.salu('s_mul_i32', sTMP2, sG, W_RING)
    ec = ECompiler(p, {'l': V(0), 'w': sW, 't0': sT0, 'gw': sTMP2}, T[:])
    l = var('l')
    ec.emit(L.W_RD + var('gw') + P1_BASE, vWB)
    ec.emit(L.K_ROW * 256 + (l & 15) * 16, vKD)
    ec.emit(L.V_ROW * 256 + (l & 15) * 16, vVD)
    ec.emit(L.W_ROW * 8192 + (l & 15) * 16, vWD)
    xr = l >> 2
    ec.emit(xr * 1024 + (((l & 3) ^ ((4 - (xr >> 2)) & 3)) << 4), vX)
    xi = l & 15
    ec.emit((var('t0') << 10) + xi * 64 + (((l >> 4) ^ ((4 - (xi >> 2)) & 3)) << 4) + X_BASE, vXB)
    p.waitcnt(lgkm=0)
    p.salu('s_add_u32', sWDB, sWB, sTMP2)
    p.salu('s_add_u32', sWDB, sWDB, P1_BASE)
    p.salu('s_mul_i32', sKVB, sG, STEP)
    p.salu('s_add_u32', sKVB, sKVB, sWB)
    if XBAL:
        p.salu('s_mov_b32', sX1, sW8)
        p.scmp('s_cmp_gt_u32', sW8, 0)
        p.salu('s_subb_u32', sX1, sX1, 0)
        p.scmp('s_cmp_gt_u32', sW8, 5)
        p.salu('s_subb_u32', sX1, sX1, 0)
        p.salu('s_lshl_b32', sX1, sX1, 1)
        p.scmp('s_cmp_eq_u32', sW, sG)
        p.salu('s_cselect_b32', sX1, 12, sX1)
        p.salu('s_add_u32', sX2, sX1, 1)
        p.salu('s_lshl_b32', sX1, sX1, 14)
        p.salu('s_lshl_b32', sX2, sX2, 14)
    else:
        p.salu('s_lshl_b32', sX1, sW8, 14)
        p.salu('s_add_u32', sX2, sW8, 8)
        p.scmp('s_cmp_ge_u32', sX2, 13)
        p.salu('s_cselect_b32', sTMP, 13, 0)
        p.salu('s_sub_u32', sX2, sX2, sTMP)
        p.salu('s_lshl_b32', sX2, sX2, 14)
    p.salu('s_lshr_b32', sKS, S(2), 2)
    p.salu('s_and_b32', sKS, sKS, 14)
    p.salu('s_lshl_b32', sTMP, sKQ, 3)
    p.salu('s_lshl_b32', sTMP2, sNT, 1)
    p.salu('s_add_u32', sTMP, sTMP, sTMP2)
    p.salu('s_add_u32', sRG, sTMP, sG)
    p.salu('s_mul_i32', sTMP, sB, 212992)
    build_srd(p, X_SRD, S(40), S(41), sTMP, 212992)
    p.salu('s_lshl_b32', sTMP, sB, 5)
    p.salu('s_add_u32', sTMP, sTMP, sRG)
    p.salu('s_lshl_b32', sTMP2, sTMP, 17)
    build_srd(p, K_SRD, S(42), S(43), sTMP2, 131072)
    build_srd(p, V_SRD, S(44), S(45), sTMP2, 131072)
    p.salu('s_lshl_b32', sTMP2, sX, 8)
    p.salu('s_add_u32', sTMP, sTMP, sTMP2)
    p.salu('s_mul_i32', sTMP, sTMP, O_UNIT)
    build_srd(p, O_SRD, S(54), S(55), sTMP, O_UNIT)
    p.salu('s_lshl_b32', sTMP, sRG, 8)
    p.salu('s_sub_u32', sTMP2, 512 * 8192, sTMP)
    build_srd(p, W_SRD, S(46), S(47), sTMP, sTMP2)
    p.salu('s_lshl_b32', sTMP, sKQ, 4)
    p.salu('s_lshl_b32', sTMP2, sX, 3)
    p.salu('s_add_u32', sTMP, sTMP, sTMP2)
    p.salu('s_add_u32', sTMP, sTMP, sB)
    p.salu('s_lshl_b32', sTMP, sTMP, 2)
    p.salu('s_add_u32', sTMP, sTMP, sNT)
    p.salu('s_mul_i32', sTMP, sTMP, PART_UNIT)
    p.salu('s_add_u32', sTMP, sTMP, PART_BASE)
    build_srd(p, P_SRD, S(54), S(55), sTMP, PART_UNIT)
    build_srd(p, OUT_SRD, S(50), S(51), 0, 8 * 208 * 1024 * 2)
    build_srd(p, D_SRD, S(52), S(53), 0, 256)
    p.scmp('s_cmp_eq_u32', sW, sG)
    p.branch('s_cbranch_scc0', 'k_nt3')
    body(p, 4, '_4')
    p.label('k_nt3')
    body(p, 3, '_3')
    p.label('k_end')
    p.raw('s_endpgm')
    p.pad_hazards()
    return p


def main(out):
    import gen
    gen.K2X = K2X
    gen.PROF = PROF
    L.verify()
    k = gen_main()
    txt = gen.HEADER
    txt += f"; @launch kernel=mha_kernel grid=(256,1,1) block=(512,1,1) lds={LDS_TOTAL}\n"
    if STAGE == 1:
        txt += f"; @launch kernel=oproj_kernel grid=(256,1,1) block=(512,1,1) lds={gen.LDS_K2}\n"
    if STAGE <= 2:
        txt += f"; @launch kernel=reduce_kernel grid=(832,1,1) block=(256,1,1) lds=0\n"
    txt += '.amdgcn_target "amdgcn-amd-amdhsa--gfx950"\n'
    txt += gen.kernel_text('mha_kernel', k, 256)
    if STAGE == 1:
        txt += gen.kernel_text('oproj_kernel', gen.gen_k2(), 256)
    if STAGE <= 2:
        txt += gen.kernel_text('reduce_kernel', gen.gen_k3(), 64)
    open(out, 'w').write(txt)
    print("wrote", out, len(txt))


if __name__ == '__main__':
    for a in sys.argv[2:]:
        if a == 'prof':
            PROF = True
        elif '=' in a:
            k_, v_ = a.split('=')
            globals()[k_] = int(v_)
    main(sys.argv[1])
```
